```python
import torch

def _softmax(x, axis=-1):
    return torch.softmax(x, dim=axis)
def _gelu(x):
    return torch.nn.functional.gelu(x, approximate="tanh")
def _silu(x):
    return torch.nn.functional.silu(x)
def _sigmoid(x):
    return torch.sigmoid(x)
def _layernorm(x, axis=-1, eps=1e-5):
    m = x.mean(dim=axis, keepdim=True)
    v = x.var(dim=axis, keepdim=True, unbiased=False)
    return (x - m) / torch.sqrt(v + eps)
def _scatter_add(tgt, idx, src, axis=0):
    return tgt.clone().index_add_(axis, idx, src)
def _segment_sum(src, seg, n):
    out = torch.zeros((n,) + src.shape[1:], dtype=src.dtype)
    return out.index_add_(0, seg, src)
def _pad(x, pw):
    flat = tuple(v for pair in reversed(pw) for v in pair)
    return torch.nn.functional.pad(x, flat)

kernel_name = 'parallel_sum__sliding_block_cached__dense_activation_gelu__decode'

def setup_inputs():

    _w = (lambda a: (lambda t: t.to(torch.bfloat16) if t.is_floating_point() else t)(torch.as_tensor(a)))
    def _A_setup():
        B, Sq, D = 1, 1, 448
        Hq, Hkv, Sk, Dh = 16, 8, 65536, 256
        assert Hq % Hkv == 0, (Hq, Hkv)
        return {
            "x": _w((lambda *s: torch.randn(*s, dtype=torch.bfloat16) * 0.05)(B, Sq, D)),
            "k_cache": _w((lambda *s: torch.randn(*s, dtype=torch.bfloat16) * 3.2)(B, Hkv, Sk, Dh)),
            "v_cache": _w((lambda *s: torch.randn(*s, dtype=torch.bfloat16) * 0.8)(B, Hkv, Sk, Dh)),
            "wq": _w((lambda *s: torch.randn(*s, dtype=torch.bfloat16) * 3.2)(D, Hq * Dh) * (D ** -0.5)),
            "wo": _w((lambda *s: torch.randn(*s, dtype=torch.bfloat16) * 0.8)(Hq * Dh, D) * ((Hq * Dh) ** -0.5)),
        }
    _A_in = _A_setup()

    def _B_setup():
        B, S, D, F = 1, 1, 448, 1792
        return {
            "x": _w((lambda *s: torch.randn(*s, dtype=torch.bfloat16) * 0.05)(B, S, D)),
            "w1": _w((lambda *s: torch.randn(*s, dtype=torch.bfloat16) * 3.2)(D, F) * (D ** -0.5)),
            "b1": _w((lambda *s: torch.randn(*s, dtype=torch.bfloat16) * 3.2)(F) * 0.01),
            "w2": _w((lambda *s: torch.randn(*s, dtype=torch.bfloat16) * 0.2)(F, D) * (F ** -0.5)),
            "b2": _w((lambda *s: torch.randn(*s, dtype=torch.bfloat16) * 0.2)(D) * 0.01),
        }
    _B_in = _B_setup()

    return {
        "A_x": _A_in["x"],
        "A_k_cache": _A_in["k_cache"],
        "A_v_cache": _A_in["v_cache"],
        "A_wq": _A_in["wq"],
        "A_wo": _A_in["wo"],
        "B_x": _B_in["x"],
        "B_w1": _B_in["w1"],
        "B_b1": _B_in["b1"],
        "B_w2": _B_in["w2"],
        "B_b2": _B_in["b2"],
    }

def reference(A_x, A_k_cache, A_v_cache, A_wq, A_wo, B_x, B_w1, B_b1, B_w2, B_b2):
    def _A_ref(x, k_cache, v_cache, wq, wo):
        B, Sq, D = x.shape
        Hq, Dh = 16, 256
        Hkv, Sk = k_cache.shape[1], k_cache.shape[2]
        W = min(4096, max(256, Sk // 4))
        rep = Hq // Hkv
        q = (lambda x, *d: x.permute(*d))((x @ wq).reshape(B, Sq, Hq, Dh), 0, 2, 1, 3)
        k = (lambda x, n, axis: torch.repeat_interleave(x, n, dim=axis))(k_cache[:, :, Sk - W:, :], rep, axis=1)
        v = (lambda x, n, axis: torch.repeat_interleave(x, n, dim=axis))(v_cache[:, :, Sk - W:, :], rep, axis=1)
        scores = torch.einsum("bhqd,bhkd->bhqk", q, k) * (Dh ** -0.5)
        p = _softmax(scores, axis=-1)
        o = torch.einsum("bhqk,bhkd->bhqd", p, v)
        return (lambda x, *d: x.permute(*d))(o, 0, 2, 1, 3).reshape(B, Sq, Hq * Dh) @ wo

    def _B_ref(x, w1, b1, w2, b2):
        h = torch.einsum("bsd,df->bsf", x, w1) + b1
        h = _gelu(h)
        return torch.einsum("bsf,fd->bsd", h, w2) + b2

    x = A_x
    xn = _layernorm(x, axis=-1)
    return x + _A_ref(xn, A_k_cache, A_v_cache, A_wq, A_wo) + _B_ref(xn, B_w1, B_b1, B_w2, B_b2)
```

```python
import sys, math, struct

NAME = "parallel_sum__sliding_block_cached__dense_activation_gelu__decode"
KN = NAME + "_kernel"
f2u = lambda x: struct.unpack("<I", struct.pack("<f", x))[0]

LDS_K = 0
LDS_V = 65536
LDS_W = 131072
LDS_XN = 152576
LDS_Q = 153600
LDS_G = 154624
LDS_FL = 154688
LDS_SIZE = 155136
F_K, F_V, F_W, F_Q, F_PUB, F_G = 0, 4, 8, 12, 16, 20

WS_EPOCH = 0
WS_QP = 0x10000
WS_HP = 0x40000
WS_OP = 0x100000
OP_STRIDE = 4224
WS_PP = 0x300000
PP_STRIDE = 3584
WS_STAMP = 0x800000
PHI = 0x9E3779B9
TO_BIT = 22

class Gen:
    def __init__(self, stamps, window, nt):
        self.L = []
        self.stamps = stamps
        self.window = window
        self.nt = nt
        self.lab = 0
    def __call__(self, s):
        for x in s.split("\n"):
            self.L.append(x)
    def label(self, base):
        self.lab += 1
        return f"L_{base}_{self.lab}"
    def nop(self, n):
        while n > 0:
            k = min(n, 16)
            self(f"s_nop {k-1}")
            n -= k
    def stamp(self, idx):
        if self.stamps:
            self(f"s_memrealtime s[{70+2*idx}:{71+2*idx}]")
    def flush_stamps(self, n=14):
        if not self.stamps: return
        self("s_waitcnt lgkmcnt(0)")
        self("s_mov_b64 exec, 1")
        self("s_mul_i32 s60, s2, 5")
        self("s_add_u32 s60, s60, s30")
        self("s_lshl_b32 s60, s60, 7")
        self(f"s_add_u32 s60, s60, {WS_STAMP}")
        self("v_mov_b32 v1, s60")
        for i in range(n):
            self(f"v_mov_b32 v2, s{70+2*i}")
            self(f"global_store_dword v1, v2, s[28:29] offset:{4*i}")
            self("s_nop 1")
        self("s_mov_b64 exec, -1")
    def timeout(self, loop):
        self("s_add_u32 s59, s59, 1")
        self(f"s_bitcmp1_b32 s59, {TO_BIT}")
        self(f"s_cbranch_scc0 {loop}")
        self("s_branch L_end")
    def wait_lds(self, off, val, sleep=False):
        L = self.label("wl"); D = self.label("wld")
        self(f"{L}:")
        self(f"ds_read_b32 v14, v15 offset:{off}")
        self("s_waitcnt lgkmcnt(0)")
        self("v_readfirstlane_b32 s58, v14")
        self(f"s_cmp_ge_u32 s58, {val}")
        self(f"s_cbranch_scc1 {D}")
        if sleep: self("s_sleep 1")
        self.timeout(L)
        self(f"{D}:")
    def set_lds(self, off, val):
        self(f"v_mov_b32 v14, {val}")
        self(f"ds_write_b32 v15, v14 offset:{off}")
    def xswap(self, which, op, v, t):
        self(f"v_mov_b32 v{t}, v{v}")
        self.nop(2)
        self(f"v_permlane{which}_swap_b32 v{v}, v{t}")
        self.nop(1)
        self(f"v_{op}_f32 v{v}, v{v}, v{t}")
    def allreduce(self, op, v, t, bits):
        assert (2 in bits) <= (3 in bits)
        for b in bits:
            if b in (0, 1, 2, 3):
                sel = {0: "quad_perm:[1,0,3,2]", 1: "quad_perm:[2,3,0,1]", 2: "row_ror:4", 3: "row_ror:8"}[b]
                self.nop(2)
                self(f"v_{op}_f32_dpp v{v}, v{v}, v{v} {sel} row_mask:0xf bank_mask:0xf")
            elif b == 4: self.xswap(16, op, v, t)
            elif b == 5: self.xswap(32, op, v, t)
    def bf16r(self, dst, src):
        self(f"v_cvt_pk_bf16_f32 v{dst}, v{src}, v{src}")
        self(f"v_lshlrev_b32 v{dst}, 16, v{dst}")
    def scatter8(self, a, tmp):
        g = self
        g.nop(2)
        for j in range(4): g(f"v_permlane32_swap_b32 v{a+j}, v{a+4+j}")
        g.nop(1)
        for j in range(4): g(f"v_add_f32 v{a+j}, v{a+j}, v{a+4+j}")
        g.nop(2)
        for j in range(2): g(f"v_permlane16_swap_b32 v{a+j}, v{a+2+j}")
        g.nop(1)
        for j in range(2): g(f"v_add_f32 v{a+j}, v{a+j}, v{a+2+j}")
        g(f"v_and_b32 v{tmp}, 8, v0")
        g(f"v_cmp_ne_u32 vcc, 0, v{tmp}")
        g(f"v_add_f32_dpp v{a}, v{a}, v{a} row_ror:8 row_mask:0xf bank_mask:0xf")
        g(f"v_add_f32_dpp v{a+1}, v{a+1}, v{a+1} row_ror:8 row_mask:0xf bank_mask:0xf")
        g.nop(1)
        g(f"v_cndmask_b32 v{a}, v{a}, v{a+1}, vcc")
    def check_tags(self, regs, done, loop, sleep=0):
        g = self
        first = True
        for r in regs:
            g(f"v_cmp_ne_u32 vcc, s33, v{r}")
            g("s_mov_b64 s[62:63], vcc" if first else "s_or_b64 s[62:63], s[62:63], vcc")
            first = False
        g("s_cmp_eq_u64 s[62:63], 0")
        g(f"s_cbranch_scc1 {done}")
        if sleep: g(f"s_sleep {sleep}")
        g.timeout(loop)

def build(stamps=False, window=24, nt="nt"):
    A = g = Gen(stamps, window, nt)
    A(f"; @launch grid=(256,1,1) block=(320,1,1) lds={LDS_SIZE}")
    A('.amdgcn_target "amdgcn-amd-amdhsa--gfx950"')
    A(".text")
    A(f".globl {KN}")
    A(".p2align 8")
    A(f".type {KN},@function")
    A(f"{KN}:")
    g.stamp(0)
    A("s_load_dwordx16 s[4:19], s[0:1], 0")
    A("s_load_dwordx8 s[20:27], s[0:1], 64")
    A("s_load_dwordx2 s[28:29], s[0:1], 96")
    A("s_cmp_ge_u32 s2, 256")
    A("s_cbranch_scc1 L_end")
    A("v_lshrrev_b32 v1, 6, v0")
    A("v_and_b32 v0, 63, v0")
    A("v_readfirstlane_b32 s30, v1")
    A("s_and_b32 s31, s2, 7")
    A("s_lshr_b32 s32, s2, 3")
    A("s_mov_b32 s59, 0")
    A(f"v_mov_b32 v15, {LDS_FL}")
    A("s_cmp_eq_u32 s30, 4")
    A("s_cbranch_scc1 L_loader")

    A("s_lshr_b32 s51, s32, 3\ns_lshl_b32 s51, s51, 3\ns_add_u32 s51, s51, s31")
    A("s_and_b32 s52, s32, 7")
    A("s_min_u32 s53, s51, 27")
    A("s_lshl_b32 s53, s53, 5\ns_lshl_b32 s54, s52, 2\ns_add_u32 s53, s53, s54")
    A("v_lshrrev_b32 v2, 3, v0")
    A("v_and_b32 v3, 7, v0")
    A("s_cmp_ge_u32 s30, 2")
    A("s_cbranch_scc1 L_c23_pre")
    A("s_cmp_eq_u32 s30, 1")
    A("s_cbranch_scc1 L_c1_par")
    A("s_and_b32 s46, s32, 3")
    A("s_mul_i32 s46, s46, 112")
    A("s_lshl_b32 s44, s46, 13")
    A("s_lshr_b32 s47, s32, 2")
    A("s_lshl_b32 s47, s47, 7")
    A("s_add_u32 s44, s44, s47")
    A("s_lshl_b32 s47, s31, 10")
    A("s_add_u32 s44, s44, s47")
    A("s_movk_i32 s45, 8192")
    A(f"s_mov_b32 s47, {448*4096*2}")
    A("s_waitcnt lgkmcnt(0)")
    A("s_mov_b32 s48, s10")
    A("s_mov_b32 s49, s11")
    A("s_branch L_c01_ld")
    A("L_c1_par:")
    A("s_mul_i32 s46, s31, 56")
    A("s_mul_i32 s44, s46, 3584")
    A("s_min_u32 s47, s32, 27")
    A("s_lshl_b32 s47, s47, 7")
    A("s_add_u32 s44, s44, s47")
    A("s_movk_i32 s45, 3584")
    A(f"s_mov_b32 s47, {448*1792*2}")
    A("s_waitcnt lgkmcnt(0)")
    A("s_mov_b32 s48, s16")
    A("s_mov_b32 s49, s17")
    A("L_c01_ld:")
    A("s_mov_b32 s40, s4\ns_and_b32 s41, s5, 0xffff\ns_movk_i32 s42, 896\ns_mov_b32 s43, 0x20000")
    A("v_lshlrev_b32 v4, 4, v0")
    A("buffer_load_dwordx4 v[16:19], v4, s[40:43], 0 offen")
    A("s_add_u32 s36, s48, s44\ns_addc_u32 s37, s49, 0\ns_and_b32 s37, s37, 0xffff")
    A("s_sub_u32 s38, s47, s44\ns_mov_b32 s39, 0x20000")
    A("v_mul_lo_u32 v5, v2, s45")
    A("v_lshl_add_u32 v5, v3, 4, v5")
    A("s_lshl_b32 s45, s45, 3")
    A("s_mov_b32 s50, 0")
    for i in range(7):
        A(f"buffer_load_dwordx4 v[{64+4*i}:{67+4*i}], v5, s[36:39], s50 offen {nt}")
        A("s_add_u32 s50, s50, s45")
    A("s_cmp_eq_u32 s30, 1")
    A("s_cbranch_scc1 L_c1_ld2")
    for i in range(7, 14):
        A(f"buffer_load_dwordx4 v[{64+4*i}:{67+4*i}], v5, s[36:39], s50 offen {nt}")
        A("s_add_u32 s50, s50, s45")
    A("v_mov_b32 v63, 0\nglobal_load_dword v63, v63, s[28:29] sc1")
    A("s_load_dword s55, s[4:5], s53")
    A("s_load_dword s56, s[22:23], s53")
    A("s_branch L_c_bar0")
    A("L_c1_ld2:")
    A("v_mov_b32 v63, 0\nglobal_load_dword v63, v63, s[28:29] sc1")
    A("s_min_u32 s57, s2, 223")
    A("s_lshl_b32 s57, s57, 4")
    A("v_and_b32 v6, 3, v0")
    A("v_lshl_add_u32 v6, v6, 2, s57")
    A("global_load_dword v60, v6, s[18:19]")
    A("s_branch L_c_bar0")
    A("L_c23_pre:")
    A("s_waitcnt lgkmcnt(0)")
    A("v_mov_b32 v63, 0\nglobal_load_dword v63, v63, s[28:29] sc1")
    A("L_c_bar0:")
    A("s_barrier")
    g.stamp(1)
    A("s_cmp_ge_u32 s30, 2")
    A("s_cbranch_scc1 L_qgather_wait")

    A("s_waitcnt vmcnt(9)")
    g.stamp(2)
    for k in range(4):
        A(f"v_lshlrev_b32 v{20+2*k}, 16, v{16+k}")
        A(f"v_and_b32 v{21+2*k}, 0xffff0000, v{16+k}")
    A("v_add_f32 v28, v20, v21\nv_add_f32 v29, v22, v23\nv_add_f32 v30, v24, v25\nv_add_f32 v31, v26, v27")
    A("v_add_f32 v28, v28, v29\nv_add_f32 v30, v30, v31\nv_add_f32 v28, v28, v30")
    g.allreduce("add", 28, 29, [0, 1, 2, 3, 4, 5])
    A(f"s_mov_b32 s60, {f2u(1.0/448):#x}")
    A(f"s_mov_b32 s61, {f2u(448.0):#x}")
    A("v_mul_f32 v29, s60, v28")
    A("v_fma_f32 v30, -v29, s61, v28")
    A("v_fma_f32 v29, v30, s60, v29")
    A("v_mov_b32 v30, 0")
    for k in range(8):
        A(f"v_sub_f32 v31, v{20+k}, v29")
        A("v_fmac_f32 v30, v31, v31")
    A("v_cmp_gt_u32 vcc, 56, v0")
    g.nop(2)
    A("v_cndmask_b32 v30, 0, v30, vcc")
    g.allreduce("add", 30, 31, [0, 1, 2, 3, 4, 5])
    A("v_mul_f32 v31, s60, v30")
    A("v_fma_f32 v32, -v31, s61, v30")
    A("v_fma_f32 v31, v32, s60, v31")
    g.bf16r(29, 29)
    g.bf16r(31, 31)
    A(f"v_add_f32 v31, {f2u(1e-5):#x}, v31")
    g.bf16r(31, 31)
    A("v_sqrt_f32 v31, v31")
    g.nop(1)
    g.bf16r(31, 31)
    A("v_rcp_f32 v32, v31")
    g.nop(1)
    for k in range(4):
        a, b = 20+2*k, 21+2*k
        A(f"v_sub_f32 v{a}, v{a}, v29")
        A(f"v_sub_f32 v{b}, v{b}, v29")
        A(f"v_cvt_pk_bf16_f32 v33, v{a}, v{b}")
        A(f"v_lshlrev_b32 v{a}, 16, v33")
        A(f"v_and_b32 v{b}, 0xffff0000, v33")
        for r in (a, b):
            A(f"v_mul_f32 v34, v{r}, v32")
            A(f"v_fma_f32 v35, -v34, v31, v{r}")
            A(f"v_fma_f32 v{r}, v35, v32, v34")
        A(f"v_cvt_pk_bf16_f32 v{16+k}, v{a}, v{b}")
    A("v_lshlrev_b32 v4, 4, v0")
    A(f"v_add_u32 v4, {LDS_XN}, v4")
    A("ds_write_b128 v4, v[16:19]")
    A("v_add_u32 v6, s46, v2")
    A("v_lshlrev_b32 v6, 1, v6")
    A(f"v_add_u32 v6, {LDS_XN}, v6")
    A("s_waitcnt lgkmcnt(0)")
    for i in range(14):
        A(f"ds_read_u16 v{40+i}, v6 offset:{16*i}")
    for k in range(8):
        A(f"v_mov_b32 v{32+k}, 0")
    g.stamp(3)
    A("s_waitcnt vmcnt(0) lgkmcnt(0)")
    g.stamp(4)
    def gemv_steps(lo, hi):
        for i in range(lo, hi):
            t = 54 + (i & 1)
            A(f"v_lshlrev_b32 v{t}, 16, v{40+i}")
            for j in range(4):
                A(f"v_dot2_f32_bf16 v{32+2*j}, v{64+4*i+j}, v{40+i}, v{32+2*j}")
            for j in range(4):
                A(f"v_dot2_f32_bf16 v{33+2*j}, v{64+4*i+j}, v{t}, v{33+2*j}")
    gemv_steps(0, 7)
    A("s_cmp_eq_u32 s30, 1")
    A("s_cbranch_scc1 L_gemv_red")
    gemv_steps(7, 14)
    A("L_gemv_red:")
    g.nop(4)
    g.scatter8(32, 34+8)
    A("v_readfirstlane_b32 s33, v63")
    A(f"s_add_u32 s33, s33, {PHI}")
    A("v_mov_b32 v33, s33")
    A("v_lshlrev_b32 v34, 6, v3")
    A("v_lshl_add_u32 v34, v2, 3, v34")
    A("s_cmp_eq_u32 s30, 1")
    A("s_cbranch_scc1 L_c1_pub")
    A("s_lshl_b32 s60, s31, 14\ns_lshl_b32 s61, s32, 9\ns_add_u32 s60, s60, s61")
    A(f"s_add_u32 s60, s60, {WS_QP}")
    A("v_add_u32 v34, s60, v34")
    A("global_store_dwordx2 v34, v[32:33], s[28:29] sc1")
    g.stamp(5)
    A("s_waitcnt vmcnt(0)")
    g.set_lds(F_PUB, 1)
    g.stamp(6)
    A("s_branch L_qgather")
    A("L_c1_pub:")
    A("s_cmp_ge_u32 s32, 28")
    A("s_cbranch_scc1 L_qgather_wait2")
    A("s_lshl_b32 s60, s32, 12\ns_lshl_b32 s61, s31, 9\ns_add_u32 s60, s60, s61")
    A(f"s_add_u32 s60, s60, {WS_HP}")
    A("v_add_u32 v34, s60, v34")
    A("global_store_dwordx2 v34, v[32:33], s[28:29] sc1")
    A("s_branch L_qgather_wait2")

    A("L_qgather_wait:")
    A("s_waitcnt vmcnt(0)")
    A("v_readfirstlane_b32 s33, v63")
    A(f"s_add_u32 s33, s33, {PHI}")
    A("L_qgather_wait2:")
    g.wait_lds(F_PUB, 1, sleep=True)
    A("L_qgather:")
    A("v_lshrrev_b32 v4, 5, v0")
    A("s_lshl_b32 s60, s30, 1")
    A("v_add_u32 v4, s60, v4")
    A("v_and_b32 v5, 31, v0")
    A("v_lshlrev_b32 v6, 11, v4")
    A("v_lshl_add_u32 v6, v5, 4, v6")
    A("s_lshl_b32 s60, s31, 14")
    A(f"s_add_u32 s60, s60, {WS_QP}")
    A("v_add_u32 v6, s60, v6")
    Lq = g.label("qg"); Lqd = g.label("qgd")
    A(f"{Lq}:")
    for rc in range(4):
        A(f"global_load_dwordx4 v[{64+4*rc}:{67+4*rc}], v6, s[28:29] offset:{512*rc} sc1")
    A("s_waitcnt vmcnt(0)")
    g.check_tags([65, 67, 69, 71, 73, 75, 77, 79], Lqd, Lq, sleep=4)
    A(f"{Lqd}:")
    A("v_add_f32 v64, v64, v68\nv_add_f32 v66, v66, v70")
    A("v_add_f32 v64, v64, v72\nv_add_f32 v66, v66, v74")
    A("v_add_f32 v64, v64, v76\nv_add_f32 v66, v66, v78")
    A("v_cvt_pk_bf16_f32 v64, v64, v66")
    A("v_lshlrev_b32 v6, 7, v4")
    A("v_lshl_add_u32 v6, v5, 2, v6")
    A(f"v_add_u32 v6, {LDS_Q}, v6")
    A("ds_write_b32 v6, v64")
    A("s_waitcnt lgkmcnt(0)")
    A("s_mov_b64 exec, 1")
    A("v_mov_b32 v14, 1")
    A(f"ds_add_u32 v15, v14 offset:{F_Q}")
    A("s_mov_b64 exec, -1")
    g.stamp(7)
    A("s_cmp_lg_u32 s30, 1")
    A("s_cbranch_scc1 L_scores")
    A("s_cmp_ge_u32 s32, 28")
    A("s_cbranch_scc1 L_g_zero")
    A("v_lshrrev_b32 v4, 2, v0\nv_and_b32 v4, 7, v4\nv_lshlrev_b32 v4, 9, v4")
    A("v_and_b32 v5, 3, v0\nv_lshl_add_u32 v4, v5, 4, v4")
    A("s_lshl_b32 s60, s32, 12\ns_lshl_b32 s61, s31, 6\ns_add_u32 s60, s60, s61")
    A(f"s_add_u32 s60, s60, {WS_HP}")
    A("v_add_u32 v4, s60, v4")
    Lh = g.label("hg"); Lhd = g.label("hgd")
    A(f"{Lh}:")
    A("global_load_dwordx4 v[64:67], v4, s[28:29] sc1")
    A("s_waitcnt vmcnt(0)")
    g.check_tags([65, 67], Lhd, Lh, sleep=4)
    A(f"{Lhd}:")
    g.allreduce("add", 64, 68, [2, 3, 4])
    g.allreduce("add", 66, 68, [2, 3, 4])
    A("v_cvt_pk_bf16_f32 v64, v64, v66")
    A("v_lshlrev_b32 v65, 16, v64\nv_and_b32 v66, 0xffff0000, v64")
    A("v_lshlrev_b32 v67, 16, v60\nv_and_b32 v68, 0xffff0000, v60")
    A("v_add_f32 v65, v65, v67\nv_add_f32 v66, v66, v68")
    A("v_cvt_pk_bf16_f32 v64, v65, v66")
    A("v_lshlrev_b32 v65, 16, v64\nv_and_b32 v66, 0xffff0000, v64")
    k1 = 2*math.log2(math.e)*math.sqrt(2/math.pi)
    A(f"s_mov_b32 s60, {f2u(k1):#x}")
    A(f"s_mov_b32 s61, {f2u(0.044715):#x}")
    for r in (65, 66):
        A(f"v_mul_f32 v67, v{r}, v{r}")
        A(f"v_mul_f32 v67, v67, v{r}")
        A(f"v_fma_f32 v67, v67, s61, v{r}")
        A(f"v_mul_f32 v67, s60, v67")
        A("v_exp_f32 v67, v67")
        g.nop(1)
        A("v_add_f32 v67, 1.0, v67")
        A("v_rcp_f32 v67, v67")
        g.nop(1)
        A("v_sub_f32 v67, 1.0, v67")
        A(f"v_mul_f32 v{r}, v{r}, v67")
    A("v_cvt_pk_bf16_f32 v64, v65, v66")
    A("s_branch L_g_wr")
    A("L_g_zero:")
    A("v_mov_b32 v64, 0")
    A("L_g_wr:")
    A("v_and_b32 v4, 3, v0\nv_lshlrev_b32 v4, 2, v4")
    A(f"v_add_u32 v4, {LDS_G}, v4")
    A("ds_write_b32 v4, v64")
    A("s_waitcnt lgkmcnt(0)")
    g.set_lds(F_G, 1)

    A("L_scores:")
    g.wait_lds(F_Q, 4, sleep=True)
    g.stamp(8)
    A("v_and_b32 v4, 1, v0\nv_lshlrev_b32 v4, 9, v4")
    A("v_lshrrev_b32 v5, 4, v0")
    A("v_lshl_add_u32 v4, v5, 4, v4")
    A(f"v_add_u32 v4, {LDS_Q}, v4")
    for s in range(8):
        A(f"ds_read_b128 v[{16+4*s}:{19+4*s}], v4 offset:{64*s}")
    A("v_and_b32 v6, 15, v0")
    A("v_xor_b32 v7, v5, v6")
    for m in range(4):
        A(f"v_xor_b32 v{8+m}, {4*m}, v7")
        A(f"v_lshlrev_b32 v{8+m}, 4, v{8+m}")
        A(f"v_lshl_add_u32 v{8+m}, v6, 9, v{8+m}")
    g.wait_lds(F_K, 1, sleep=True)
    g.stamp(9)
    def kread(T):
        base = 64 + 32*(T & 1)
        for s in range(8):
            A(f"ds_read_b128 v[{base+4*s}:{base+4*s+3}], v{8+(s&3)} offset:{(s>>2)*256 + T*8192 + LDS_K}")
    kread(0)
    for T in range(8):
        if T < 7:
            kread(T+1)
            A("s_waitcnt lgkmcnt(8)")
        else:
            A("s_waitcnt lgkmcnt(0)")
        base = 64 + 32*(T & 1)
        D = 128 + 4*T
        for s in range(8):
            C = "0" if s == 0 else f"v[{D}:{D+3}]"
            A(f"v_mfma_f32_16x16x32_bf16 v[{D}:{D+3}], v[{base+4*s}:{base+4*s+3}], v[{16+4*s}:{19+4*s}], {C}")
    g.nop(8)
    for k in range(16):
        a, b = 128+2*k, 129+2*k
        A(f"v_cvt_pk_bf16_f32 v4, v{a}, v{b}")
        A(f"v_lshlrev_b32 v{a}, 16, v4")
        A(f"v_and_b32 v{b}, 0xffff0000, v4")
    A("v_max3_f32 v4, v128, v129, v130")
    for k in range(131, 159, 2):
        A(f"v_max3_f32 v4, v4, v{k}, v{k+1}")
    A("v_max_f32 v4, v4, v159")
    g.allreduce("max", 4, 5, [4, 5])
    cexp = math.log2(math.e)/16.0
    A(f"s_mov_b32 s65, {f2u(cexp):#x}")
    A("v_mul_f32 v5, s65, v4")
    for k in range(32):
        A(f"v_fma_f32 v{128+k}, v{128+k}, s65, -v5")
    for k in range(32):
        A(f"v_exp_f32 v{128+k}, v{128+k}")
    g.nop(1)
    A("v_add_f32 v6, v128, v129")
    for k in range(130, 160):
        A(f"v_add_f32 v6, v6, v{k}")
    g.allreduce("add", 6, 7, [4, 5])
    for s in range(4):
        for q in range(4):
            src = 128 + 8*s + 2*q
            A(f"v_cvt_pk_bf16_f32 v{160+4*s+q}, v{src}, v{src+1}")
    A("s_lshl_b32 s64, s31, 5\ns_add_u32 s64, s64, s32")
    A(f"s_mul_i32 s64, s64, {OP_STRIDE}")
    A(f"s_add_u32 s64, s64, {WS_OP}")
    A("s_cmp_lg_u32 s30, 0")
    Ls = g.label("nostat")
    A(f"s_cbranch_scc1 {Ls}")
    A("v_mov_b32 v5, s33\nv_mov_b32 v7, s33")
    A("v_lshlrev_b32 v12, 4, v0")
    A("s_add_u32 s60, s64, 4096")
    A("v_add_u32 v12, s60, v12")
    A("s_mov_b64 exec, 3")
    A("global_store_dwordx4 v12, v[4:7], s[28:29] sc1")
    A("s_mov_b64 exec, -1")
    A(f"{Ls}:")
    g.stamp(10)
    for t in range(4):
        A(f"s_mov_b32 s66, {0x00030003 << (2*t):#x}\ns_mov_b32 s67, s66")
        for s in range(4):
            for q in range(4):
                A(f"v_cndmask_b32 v{176+16*s+4*t+q}, 0, v{160+4*s+q}, s[66:67]")
    A("v_lshrrev_b32 v4, 2, v0")
    A("v_and_b32 v5, 7, v4")
    A("v_and_b32 v6, 3, v0\nv_lshlrev_b32 v6, 3, v6")
    A("v_lshl_add_u32 v6, v4, 9, v6")
    A(f"v_add_u32 v6, {LDS_V}, v6")
    A("s_lshl_b32 s60, s30, 2")
    for t in range(4):
        A(f"s_add_u32 s61, s60, {t}")
        A(f"v_xor_b32 v{8+t}, s61, v5")
        A(f"v_lshl_add_u32 v{8+t}, v{8+t}, 5, v6")
    A("v_and_b32 v4, 1, v0\nv_lshlrev_b32 v4, 4, v4")
    A("v_bfe_u32 v5, v0, 1, 3")
    A("v_add_u32 v4, v4, v5")
    A("v_add_u32 v4, s60, v4")
    A("v_lshlrev_b32 v4, 7, v4")
    A("v_lshrrev_b32 v5, 4, v0\nv_lshl_add_u32 v4, v5, 5, v4")
    A("v_add_u32 v12, s64, v4")
    for r in (245, 247, 249, 251):
        A(f"v_mov_b32 v{r}, s33")
    A("v_lshrrev_b32 v4, 3, v0\nv_lshlrev_b32 v4, 2, v4\nv_and_b32 v5, 3, v0\nv_add_u32 v4, v4, v5")
    A(f"s_movk_i32 s60, {OP_STRIDE}")
    A("v_mul_lo_u32 v4, v4, s60")
    A(f"s_mul_i32 s61, s31, {32*OP_STRIDE}")
    A(f"s_add_u32 s61, s61, {WS_OP}")
    A("v_add_u32 v4, s61, v4")
    A("v_bfe_u32 v5, v0, 2, 1\nv_lshlrev_b32 v5, 6, v5")
    A("s_lshl_b32 s60, s32, 7")
    A("v_add3_u32 v13, v4, v5, s60")
    A("s_lshr_b32 s60, s32, 4\ns_lshl_b32 s60, s60, 4\ns_add_u32 s60, s60, 4096")
    A("v_add_u32 v61, s60, v4")
    g.wait_lds(F_G, 1, sleep=True)
    A(f"v_mov_b32 v4, {LDS_G}")
    A("ds_read_b128 v[4:7], v4")
    A("s_waitcnt lgkmcnt(0)")
    for k in range(4):
        A(f"v_readfirstlane_b32 s{40+k}, v{4+k}")
    for s in range(4):
        g.wait_lds(F_V, s+1, sleep=(s < 3))
        if s == 3: g.stamp(11)
        for t in range(4):
            A(f"ds_read_b64_tr_b16 v[{64+4*t}:{65+4*t}], v{8+t} offset:{s*16384}")
            A(f"ds_read_b64_tr_b16 v[{66+4*t}:{67+4*t}], v{8+t} offset:{s*16384+8192}")
        for t in range(4):
            A(f"s_waitcnt lgkmcnt({6-2*t})")
            C = "0" if (s == 0 and t == 0) else "v[240:243]"
            b = 176+16*s+4*t
            A(f"v_mfma_f32_16x16x32_bf16 v[240:243], v[{64+4*t}:{67+4*t}], v[{b}:{b+3}], {C}")
    g.nop(8)
    A("v_mov_b32 v244, v240\nv_mov_b32 v246, v241\nv_mov_b32 v248, v242\nv_mov_b32 v250, v243")
    A("s_mov_b32 exec_lo, 0x00ff00ff\ns_mov_b32 exec_hi, 0x00ff00ff")
    A("global_store_dwordx4 v12, v[244:247], s[28:29] sc1")
    A("global_store_dwordx4 v12, v[248:251], s[28:29] offset:16 sc1")
    A("s_mov_b64 exec, -1")
    A("s_mul_i32 s60, s30, 56")
    A("v_add_u32 v4, s60, v0")
    A("v_lshlrev_b32 v62, 4, v4")
    A("v_lshlrev_b32 v4, 2, v4")
    A(f"v_add_u32 v4, {LDS_W}, v4")
    A("s_waitcnt vmcnt(0)")
    g.stamp(12)
    Lc = g.label("cg"); Lcd = g.label("cgd")
    def cloads():
        for q in range(4):
            A(f"global_load_dwordx4 v[{64+4*q}:{67+4*q}], v13, s[28:29] offset:{16*q} sc1")
        A("global_load_dwordx4 v[80:83], v61, s[28:29] sc1")
    cloads()
    g.wait_lds(F_W, 1, sleep=False)
    for r in range(24):
        A(f"ds_read_b32 v{96+r}, v4 offset:{896*r}")
    A("s_mov_b32 s60, 0x05040100\ns_mov_b32 s61, 0x07060302")
    A("s_waitcnt lgkmcnt(0)")
    for k in range(12):
        A(f"v_perm_b32 v{128+k}, v{97+2*k}, v{96+2*k}, s60")
        A(f"v_perm_b32 v{144+k}, v{97+2*k}, v{96+2*k}, s61")
    A("v_mov_b32 v240, 0\nv_mov_b32 v241, 0\nv_mov_b32 v242, 0\nv_mov_b32 v243, 0")
    for k in range(4):
        A(f"v_dot2_f32_bf16 v{240+(k&1)}, v{136+k}, s{40+k}, v{240+(k&1)}")
        A(f"v_dot2_f32_bf16 v{242+(k&1)}, v{152+k}, s{40+k}, v{242+(k&1)}")
    A("s_branch " + Lc + "_chk")
    A(f"{Lc}:")
    cloads()
    A(f"{Lc}_chk:")
    A("s_waitcnt vmcnt(0)")
    g.check_tags([65, 67, 69, 71, 73, 75, 77, 79, 81, 83], Lcd, Lc, sleep=0)
    A(f"{Lcd}:")
    g.stamp(13)
    A("v_mov_b32 v84, v80")
    g.allreduce("max", 84, 85, [0, 1, 3, 4, 5])
    A("v_sub_f32 v84, v80, v84")
    A("v_mul_f32 v84, s65, v84")
    A("v_exp_f32 v84, v84")
    g.nop(1)
    A("v_mul_f32 v85, v84, v82")
    for q in range(4):
        A(f"v_mul_f32 v{88+2*q}, v84, v{64+4*q}")
        A(f"v_mul_f32 v{89+2*q}, v84, v{66+4*q}")
    g.allreduce("add", 85, 86, [0, 1, 3, 4, 5])
    g.scatter8(88, 86)
    g.allreduce("add", 88, 86, [0, 1])
    A("v_rcp_f32 v85, v85")
    g.nop(1)
    A("v_mul_f32 v88, v88, v85")
    g.nop(2)
    A("v_mov_b32_dpp v89, v88 row_ror:8 row_mask:0xf bank_mask:0xf")
    A("v_cvt_pk_bf16_f32 v88, v88, v89")
    g.nop(1)
    for k in range(8):
        A(f"v_readlane_b32 s{4+k}, v88, {16*(k&3) + 4*(k>>2)}")
    g.nop(2)
    for k in range(8):
        A(f"v_dot2_f32_bf16 v{240+(k&1)}, v{128+k}, s{4+k}, v{240+(k&1)}")
        A(f"v_dot2_f32_bf16 v{242+(k&1)}, v{144+k}, s{4+k}, v{242+(k&1)}")
    g.nop(4)
    A("v_add_f32 v244, v240, v241\nv_add_f32 v246, v242, v243")
    A(f"s_mul_i32 s60, s2, {PP_STRIDE}")
    A(f"s_add_u32 s60, s60, {WS_PP}")
    A("v_add_u32 v62, s60, v62")
    A("s_mov_b32 exec_lo, -1\ns_mov_b32 exec_hi, 0x00ffffff")
    A("global_store_dwordx4 v62, v[244:247], s[28:29] sc1")
    A("s_mov_b64 exec, -1")
    A("s_cmp_lg_u32 s30, 0")
    A("s_cbranch_scc1 L_fin")
    A("s_cmp_ge_u32 s51, 28")
    A("s_cbranch_scc1 L_fin")
    A(f"s_movk_i32 s60, {PP_STRIDE}")
    A("v_mul_lo_u32 v4, v0, s60")
    A("s_lshl_b32 s60, s51, 7\ns_lshl_b32 s61, s52, 4\ns_add_u32 s60, s60, s61")
    A(f"s_add_u32 s60, s60, {WS_PP}")
    A("v_add_u32 v4, s60, v4")
    for i in range(1, 4):
        A(f"v_add_u32 v{4+i}, {i*64*PP_STRIDE}, v4")
    A("s_waitcnt vmcnt(0)")
    Ld = g.label("dg"); Ldd = g.label("dgd")
    A(f"{Ld}:")
    for i in range(4):
        A(f"global_load_dwordx4 v[{64+4*i}:{67+4*i}], v{4+i}, s[28:29] sc1")
    A("s_waitcnt vmcnt(0)")
    g.check_tags([65, 67, 69, 71, 73, 75, 77, 79], Ldd, Ld, sleep=0)
    A(f"{Ldd}:")
    A("v_add_f32 v64, v64, v68\nv_add_f32 v72, v72, v76\nv_add_f32 v66, v66, v70\nv_add_f32 v74, v74, v78")
    A("v_add_f32 v64, v64, v72\nv_add_f32 v66, v66, v74")
    g.allreduce("add", 64, 68, [0, 1, 2, 3, 4, 5])
    g.allreduce("add", 66, 68, [0, 1, 2, 3, 4, 5])
    A("s_lshl_b32 s60, s55, 16\ns_and_b32 s61, s55, 0xffff0000")
    A("v_add_f32 v64, s60, v64\nv_add_f32 v66, s61, v66")
    A("s_lshl_b32 s60, s56, 16\ns_and_b32 s61, s56, 0xffff0000")
    A("v_add_f32 v64, s60, v64\nv_add_f32 v66, s61, v66")
    A("v_cvt_pk_bf16_f32 v64, v64, v66")
    A("v_mov_b32 v4, s53")
    A("s_mov_b64 exec, 1")
    A("global_store_dword v4, v64, s[24:25]")
    A("s_cmp_lg_u32 s2, 0")
    A("s_cbranch_scc1 L_fin")
    A("v_mov_b32 v4, 0\nv_mov_b32 v5, s33")
    A("global_store_dword v4, v5, s[28:29] sc1")
    A("L_fin:")
    g.flush_stamps()
    A("s_endpgm")

    A("L_loader:")
    A("v_mov_b32 v4, 0\nv_mov_b32 v5, 0\nv_mov_b32 v6, 0\nv_mov_b32 v7, 0")
    A("ds_write_b128 v15, v[4:7]")
    A("ds_write_b128 v15, v[4:7] offset:16")
    A("v_lshrrev_b32 v1, 5, v0")
    A("v_and_b32 v2, 31, v0")
    A("v_xor_b32 v3, v2, v1")
    A("v_lshlrev_b32 v3, 4, v3")
    A("v_lshl_add_u32 v3, v1, 9, v3")
    for b in range(8):
        A(f"v_xor_b32 v{16+b}, {(2*b) << 4}, v3")
    A("v_lshlrev_b32 v3, 1, v1")
    A("v_xor_b32 v3, v2, v3")
    A("v_lshlrev_b32 v3, 4, v3")
    A("v_lshl_add_u32 v3, v1, 9, v3")
    for b in range(4):
        A(f"v_xor_b32 v{24+b}, {((2*b) & 7) << 5}, v3")
    A("v_lshlrev_b32 v28, 4, v0")
    A("s_lshl_b32 s44, s31, 25\ns_add_u32 s44, s44, 0x1e00000\ns_lshl_b32 s45, s32, 16\ns_add_u32 s44, s44, s45")
    A("s_lshl_b32 s45, s31, 5\ns_add_u32 s45, s45, s32")
    A(f"s_mul_i32 s45, s45, {16*896}")
    A("s_min_u32 s46, s2, 223")
    A(f"s_mul_i32 s46, s46, {8*896}")
    A("s_waitcnt lgkmcnt(0)")
    def srd(d, lo, hi, off, n):
        A(f"s_add_u32 s{d}, s{lo}, s{off}\ns_addc_u32 s{d+1}, s{hi}, 0\ns_and_b32 s{d+1}, s{d+1}, 0xffff")
        A(f"s_mov_b32 s{d+2}, {n}\ns_mov_b32 s{d+3}, 0x20000")
    srd(36, 6, 7, 44, 65536)
    srd(40, 8, 9, 44, 65536)
    srd(48, 12, 13, 45, 16*896)
    srd(52, 20, 21, 46, 8*896)
    A("s_barrier")
    g.stamp(1)
    groups = []
    for k in range(16):
        groups.append([(36, 16 + (4*k + i) % 8, LDS_K + 4096*k, 4096*k, 1024*i) for i in range(4)])
    for k in range(16):
        groups.append([(40, 24 + i, LDS_V + 4096*k, 4096*k, 1024*i) for i in range(4)])
    for k in range(4):
        n = 4 if k < 3 else 2
        groups.append([(48, 28, LDS_W + 4096*k, 4096*k, 1024*i) for i in range(n)])
    for k in range(2):
        n = 4 if k < 1 else 3
        groups.append([(52, 28, LDS_W + 14336 + 4096*k, 4096*k, 1024*i) for i in range(n)])
    total = sum(len(x) for x in groups)
    events = [(64, F_K, 1, 2), (80, F_V, 1, None), (96, F_V, 2, None), (112, F_V, 3, None), (128, F_V, 4, 3), (total, F_W, 1, 4)]
    issued = 0
    ev = 0
    for gi, grp in enumerate(groups):
        A(f"s_mov_b32 m0, {grp[0][2]}")
        A(f"s_mov_b32 s56, {grp[0][3]}")
        for (sr, va, lb, so, io) in grp:
            A(f"buffer_load_dwordx4 v{va}, s[{sr}:{sr+3}], s56 offen offset:{io} {nt} lds")
            issued += 1
        if issued > window and gi < len(groups) - 1:
            A(f"s_waitcnt vmcnt({window})")
            done = issued - window
            while ev < len(events) and events[ev][0] <= done:
                g.set_lds(events[ev][1], events[ev][2])
                if events[ev][3] is not None: g.stamp(events[ev][3])
                ev += 1
    g.stamp(5)
    while ev < len(events):
        A(f"s_waitcnt vmcnt({total - events[ev][0]})")
        g.set_lds(events[ev][1], events[ev][2])
        if events[ev][3] is not None: g.stamp(events[ev][3])
        ev += 1
    A("s_waitcnt lgkmcnt(0)")
    g.flush_stamps()
    A("L_end:")
    A("s_endpgm")
    A('.section .rodata,"a"')
    A(".p2align 6")
    A(f".amdhsa_kernel {KN}")
    A("  .amdhsa_next_free_vgpr 256")
    A("  .amdhsa_next_free_sgpr 102")
    A("  .amdhsa_accum_offset 256")
    A("  .amdhsa_group_segment_fixed_size 0")
    A("  .amdhsa_kernarg_size 104")
    A("  .amdhsa_user_sgpr_count 2")
    A("  .amdhsa_user_sgpr_kernarg_segment_ptr 1")
    A("  .amdhsa_system_sgpr_workgroup_id_x 1")
    A(".end_amdhsa_kernel")
    return "\n".join(g.L) + "\n"

HEADER = open("cdna_kernels/" + NAME + ".s.ref").read().split("; Override launch")[0] if False else ""

if __name__ == "__main__":
    import argparse
    ap = argparse.ArgumentParser()
    ap.add_argument("-o", default="cdna_kernels/" + NAME + ".s")
    ap.add_argument("--stamps", action="store_true")
    ap.add_argument("--window", type=int, default=24)
    ap.add_argument("--nt", default="nt")
    a = ap.parse_args()
    open(a.o, "w").write(build(a.stamps, a.window, a.nt))
    print("wrote", a.o)
```

```python
import sys, math, struct

NAME = "parallel_sum__sliding_block_cached__dense_activation_gelu__decode"
KN = NAME + "_kernel"
f2u = lambda x: struct.unpack("<I", struct.pack("<f", x))[0]

LDS_K = 0
LDS_V = 65536
LDS_W = 131072
LDS_XN = 152576
LDS_Q = 153600
LDS_G = 154624
LDS_FL = 154688
LDS_SIZE = 155136
F_K, F_V, F_W, F_Q, F_PUB, F_G = 0, 4, 8, 12, 16, 20

WS_EPOCH = 0
WS_QP = 0x10000
WS_HP = 0x40000
WS_OP = 0x100000
OP_STRIDE = 4224
WS_PP = 0x300000
PP_STRIDE = 3584
WS_STAMP = 0x800000
PHI = 0x9E3779B9
TO_BIT = 22

class Gen:
    def __init__(self, stamps, window, nt):
        self.L = []
        self.stamps = stamps
        self.window = window
        self.nt = nt
        self.lab = 0
    def __call__(self, s):
        for x in s.split("\n"):
            self.L.append(x)
    def label(self, base):
        self.lab += 1
        return f"L_{base}_{self.lab}"
    def nop(self, n):
        while n > 0:
            k = min(n, 16)
            self(f"s_nop {k-1}")
            n -= k
    def stamp(self, idx):
        if self.stamps:
            self(f"s_memrealtime s[{70+2*idx}:{71+2*idx}]")
    def flush_stamps(self, n=14):
        if not self.stamps: return
        self("s_waitcnt lgkmcnt(0)")
        self("s_mov_b64 exec, 1")
        self("s_mul_i32 s60, s2, 5")
        self("s_add_u32 s60, s60, s30")
        self("s_lshl_b32 s60, s60, 7")
        self(f"s_add_u32 s60, s60, {WS_STAMP}")
        self("v_mov_b32 v1, s60")
        for i in range(n):
            self(f"v_mov_b32 v2, s{70+2*i}")
            self(f"global_store_dword v1, v2, s[28:29] offset:{4*i}")
            self("s_nop 1")
        self("s_mov_b64 exec, -1")
    def timeout(self, loop):
        self("s_add_u32 s59, s59, 1")
        self(f"s_bitcmp1_b32 s59, {TO_BIT}")
        self(f"s_cbranch_scc0 {loop}")
        self("s_branch L_end")
    def wait_lds(self, off, val, sleep=False):
        L = self.label("wl"); D = self.label("wld")
        self(f"{L}:")
        self(f"ds_read_b32 v14, v15 offset:{off}")
        self("s_waitcnt lgkmcnt(0)")
        self("v_readfirstlane_b32 s58, v14")
        self(f"s_cmp_ge_u32 s58, {val}")
        self(f"s_cbranch_scc1 {D}")
        if sleep: self("s_sleep 1")
        self.timeout(L)
        self(f"{D}:")
    def set_lds(self, off, val):
        self(f"v_mov_b32 v14, {val}")
        self(f"ds_write_b32 v15, v14 offset:{off}")
    def xswap(self, which, op, v, t):
        self(f"v_mov_b32 v{t}, v{v}")
        self.nop(2)
        self(f"v_permlane{which}_swap_b32 v{v}, v{t}")
        self.nop(1)
        self(f"v_{op}_f32 v{v}, v{v}, v{t}")
    def allreduce(self, op, v, t, bits):
        assert (2 in bits) <= (3 in bits)
        for b in bits:
            if b in (0, 1, 2, 3):
                sel = {0: "quad_perm:[1,0,3,2]", 1: "quad_perm:[2,3,0,1]", 2: "row_ror:4", 3: "row_ror:8"}[b]
                self.nop(2)
                self(f"v_{op}_f32_dpp v{v}, v{v}, v{v} {sel} row_mask:0xf bank_mask:0xf")
            elif b == 4: self.xswap(16, op, v, t)
            elif b == 5: self.xswap(32, op, v, t)
    def bf16r(self, dst, src):
        self(f"v_cvt_pk_bf16_f32 v{dst}, v{src}, v{src}")
        self(f"v_lshlrev_b32 v{dst}, 16, v{dst}")
    def scatter8(self, a, tmp):
        g = self
        g.nop(2)
        for j in range(4): g(f"v_permlane32_swap_b32 v{a+j}, v{a+4+j}")
        g.nop(1)
        for j in range(4): g(f"v_add_f32 v{a+j}, v{a+j}, v{a+4+j}")
        g.nop(2)
        for j in range(2): g(f"v_permlane16_swap_b32 v{a+j}, v{a+2+j}")
        g.nop(1)
        for j in range(2): g(f"v_add_f32 v{a+j}, v{a+j}, v{a+2+j}")
        g(f"v_and_b32 v{tmp}, 8, v0")
        g(f"v_cmp_ne_u32 vcc, 0, v{tmp}")
        g(f"v_add_f32_dpp v{a}, v{a}, v{a} row_ror:8 row_mask:0xf bank_mask:0xf")
        g(f"v_add_f32_dpp v{a+1}, v{a+1}, v{a+1} row_ror:8 row_mask:0xf bank_mask:0xf")
        g.nop(1)
        g(f"v_cndmask_b32 v{a}, v{a}, v{a+1}, vcc")
    def check_tags(self, regs, done, loop, sleep=0):
        g = self
        first = True
        for r in regs:
            g(f"v_cmp_ne_u32 vcc, s33, v{r}")
            g("s_mov_b64 s[62:63], vcc" if first else "s_or_b64 s[62:63], s[62:63], vcc")
            first = False
        g("s_cmp_eq_u64 s[62:63], 0")
        g(f"s_cbranch_scc1 {done}")
        if sleep: g(f"s_sleep {sleep}")
        g.timeout(loop)

def build(stamps=False, window=24, nt="nt", dbg=False):
    A = g = Gen(stamps, window, nt)
    A(f"; @launch grid=(256,1,1) block=(320,1,1) lds={LDS_SIZE}")
    A('.amdgcn_target "amdgcn-amd-amdhsa--gfx950"')
    A(".text")
    A(f".globl {KN}")
    A(".p2align 8")
    A(f".type {KN},@function")
    A(f"{KN}:")
    g.stamp(0)
    if dbg: A("s_memrealtime s[98:99]")
    A("s_load_dwordx16 s[4:19], s[0:1], 0")
    A("s_load_dwordx8 s[20:27], s[0:1], 64")
    A("s_load_dwordx2 s[28:29], s[0:1], 96")
    A("s_cmp_ge_u32 s2, 256")
    A("s_cbranch_scc1 L_end")
    A("v_lshrrev_b32 v1, 6, v0")
    A("v_and_b32 v0, 63, v0")
    A("v_readfirstlane_b32 s30, v1")
    A("s_and_b32 s31, s2, 7")
    A("s_lshr_b32 s32, s2, 3")
    A("s_mov_b32 s59, 0")
    A(f"v_mov_b32 v15, {LDS_FL}")
    A("s_cmp_eq_u32 s30, 4")
    A("s_cbranch_scc1 L_loader")

    A("s_lshr_b32 s51, s32, 3\ns_lshl_b32 s51, s51, 3\ns_add_u32 s51, s51, s31")
    A("s_and_b32 s52, s32, 7")
    A("s_min_u32 s53, s51, 27")
    A("s_lshl_b32 s53, s53, 5\ns_lshl_b32 s54, s52, 2\ns_add_u32 s53, s53, s54")
    A("v_lshrrev_b32 v2, 3, v0")
    A("v_and_b32 v3, 7, v0")
    A("s_cmp_ge_u32 s30, 2")
    A("s_cbranch_scc1 L_c23_pre")
    A("s_cmp_eq_u32 s30, 1")
    A("s_cbranch_scc1 L_c1_par")
    A("s_and_b32 s46, s32, 3")
    A("s_mul_i32 s46, s46, 112")
    A("s_lshl_b32 s44, s46, 13")
    A("s_lshr_b32 s47, s32, 2")
    A("s_lshl_b32 s47, s47, 7")
    A("s_add_u32 s44, s44, s47")
    A("s_lshl_b32 s47, s31, 10")
    A("s_add_u32 s44, s44, s47")
    A("s_movk_i32 s45, 8192")
    A(f"s_mov_b32 s47, {448*4096*2}")
    A("s_waitcnt lgkmcnt(0)")
    A("s_mov_b32 s48, s10")
    A("s_mov_b32 s49, s11")
    A("s_branch L_c01_ld")
    A("L_c1_par:")
    A("s_mul_i32 s46, s31, 56")
    A("s_mul_i32 s44, s46, 3584")
    A("s_min_u32 s47, s32, 27")
    A("s_lshl_b32 s47, s47, 7")
    A("s_add_u32 s44, s44, s47")
    A("s_movk_i32 s45, 3584")
    A(f"s_mov_b32 s47, {448*1792*2}")
    A("s_waitcnt lgkmcnt(0)")
    A("s_mov_b32 s48, s16")
    A("s_mov_b32 s49, s17")
    A("L_c01_ld:")
    A("s_mov_b32 s40, s4\ns_and_b32 s41, s5, 0xffff\ns_movk_i32 s42, 896\ns_mov_b32 s43, 0x20000")
    A("v_lshlrev_b32 v4, 4, v0")
    A("buffer_load_dwordx4 v[16:19], v4, s[40:43], 0 offen")
    A("s_add_u32 s36, s48, s44\ns_addc_u32 s37, s49, 0\ns_and_b32 s37, s37, 0xffff")
    A("s_sub_u32 s38, s47, s44\ns_mov_b32 s39, 0x20000")
    A("v_mul_lo_u32 v5, v2, s45")
    A("v_lshl_add_u32 v5, v3, 4, v5")
    A("s_lshl_b32 s45, s45, 3")
    A("s_mov_b32 s50, 0")
    for i in range(7):
        A(f"buffer_load_dwordx4 v[{64+4*i}:{67+4*i}], v5, s[36:39], s50 offen {nt}")
        A("s_add_u32 s50, s50, s45")
    A("s_cmp_eq_u32 s30, 1")
    A("s_cbranch_scc1 L_c1_ld2")
    for i in range(7, 14):
        A(f"buffer_load_dwordx4 v[{64+4*i}:{67+4*i}], v5, s[36:39], s50 offen {nt}")
        A("s_add_u32 s50, s50, s45")
    A("v_mov_b32 v63, 0\nglobal_load_dword v63, v63, s[28:29] sc1")
    A("s_load_dword s55, s[4:5], s53")
    A("s_load_dword s56, s[22:23], s53")
    A("s_branch L_c_bar0")
    A("L_c1_ld2:")
    A("v_mov_b32 v63, 0\nglobal_load_dword v63, v63, s[28:29] sc1")
    A("s_min_u32 s57, s2, 223")
    A("s_lshl_b32 s57, s57, 4")
    A("v_and_b32 v6, 3, v0")
    A("v_lshl_add_u32 v6, v6, 2, s57")
    A("global_load_dword v60, v6, s[18:19]")
    A("s_branch L_c_bar0")
    A("L_c23_pre:")
    A("s_waitcnt lgkmcnt(0)")
    A("v_mov_b32 v63, 0\nglobal_load_dword v63, v63, s[28:29] sc1")
    A("L_c_bar0:")
    A("s_barrier")
    g.stamp(1)
    A("s_cmp_ge_u32 s30, 2")
    A("s_cbranch_scc1 L_qgather_wait")

    A("s_waitcnt vmcnt(9)")
    g.stamp(2)
    for k in range(4):
        A(f"v_lshlrev_b32 v{20+2*k}, 16, v{16+k}")
        A(f"v_and_b32 v{21+2*k}, 0xffff0000, v{16+k}")
    A("v_add_f32 v28, v20, v21\nv_add_f32 v29, v22, v23\nv_add_f32 v30, v24, v25\nv_add_f32 v31, v26, v27")
    A("v_add_f32 v28, v28, v29\nv_add_f32 v30, v30, v31\nv_add_f32 v28, v28, v30")
    g.allreduce("add", 28, 29, [0, 1, 2, 3, 4, 5])
    A(f"s_mov_b32 s60, {f2u(1.0/448):#x}")
    A(f"s_mov_b32 s61, {f2u(448.0):#x}")
    A("v_mul_f32 v29, s60, v28")
    A("v_fma_f32 v30, -v29, s61, v28")
    A("v_fma_f32 v29, v30, s60, v29")
    A("v_mov_b32 v30, 0")
    for k in range(8):
        A(f"v_sub_f32 v31, v{20+k}, v29")
        A("v_fmac_f32 v30, v31, v31")
    A("v_cmp_gt_u32 vcc, 56, v0")
    g.nop(2)
    A("v_cndmask_b32 v30, 0, v30, vcc")
    g.allreduce("add", 30, 31, [0, 1, 2, 3, 4, 5])
    A("v_mul_f32 v31, s60, v30")
    A("v_fma_f32 v32, -v31, s61, v30")
    A("v_fma_f32 v31, v32, s60, v31")
    g.bf16r(29, 29)
    g.bf16r(31, 31)
    A(f"v_add_f32 v31, {f2u(1e-5):#x}, v31")
    g.bf16r(31, 31)
    A("v_sqrt_f32 v31, v31")
    g.nop(1)
    g.bf16r(31, 31)
    A("v_rcp_f32 v32, v31")
    g.nop(1)
    for k in range(4):
        a, b = 20+2*k, 21+2*k
        A(f"v_sub_f32 v{a}, v{a}, v29")
        A(f"v_sub_f32 v{b}, v{b}, v29")
        A(f"v_cvt_pk_bf16_f32 v33, v{a}, v{b}")
        A(f"v_lshlrev_b32 v{a}, 16, v33")
        A(f"v_and_b32 v{b}, 0xffff0000, v33")
        for r in (a, b):
            A(f"v_mul_f32 v34, v{r}, v32")
            A(f"v_fma_f32 v35, -v34, v31, v{r}")
            A(f"v_fma_f32 v{r}, v35, v32, v34")
        A(f"v_cvt_pk_bf16_f32 v{16+k}, v{a}, v{b}")
    A("v_lshlrev_b32 v4, 4, v0")
    A(f"v_add_u32 v4, {LDS_XN}, v4")
    A("ds_write_b128 v4, v[16:19]")
    A("v_add_u32 v6, s46, v2")
    A("v_lshlrev_b32 v6, 1, v6")
    A(f"v_add_u32 v6, {LDS_XN}, v6")
    A("s_waitcnt lgkmcnt(0)")
    for i in range(14):
        A(f"ds_read_u16 v{40+i}, v6 offset:{16*i}")
    for k in range(8):
        A(f"v_mov_b32 v{32+k}, 0")
    A("s_waitcnt vmcnt(0) lgkmcnt(0)")
    g.stamp(4)
    def gemv_steps(lo, hi):
        for i in range(lo, hi):
            t = 54 + (i & 1)
            A(f"v_lshlrev_b32 v{t}, 16, v{40+i}")
            for j in range(4):
                A(f"v_dot2_f32_bf16 v{32+2*j}, v{64+4*i+j}, v{40+i}, v{32+2*j}")
            for j in range(4):
                A(f"v_dot2_f32_bf16 v{33+2*j}, v{64+4*i+j}, v{t}, v{33+2*j}")
    gemv_steps(0, 7)
    A("s_cmp_eq_u32 s30, 1")
    A("s_cbranch_scc1 L_gemv_red")
    gemv_steps(7, 14)
    A("L_gemv_red:")
    g.nop(4)
    g.scatter8(32, 34+8)
    A("v_readfirstlane_b32 s33, v63")
    A(f"s_add_u32 s33, s33, {PHI}")
    A("v_mov_b32 v33, s33")
    A("v_lshlrev_b32 v34, 6, v3")
    A("v_lshl_add_u32 v34, v2, 3, v34")
    A("s_cmp_eq_u32 s30, 1")
    A("s_cbranch_scc1 L_c1_pub")
    A("s_lshl_b32 s60, s31, 14\ns_lshl_b32 s61, s32, 9\ns_add_u32 s60, s60, s61")
    A(f"s_add_u32 s60, s60, {WS_QP}")
    A("v_add_u32 v34, s60, v34")
    A("global_store_dwordx2 v34, v[32:33], s[28:29] sc1")
    g.stamp(5)
    A("s_waitcnt vmcnt(0)")
    g.set_lds(F_PUB, 1)
    g.stamp(6)
    A("s_branch L_qgather")
    A("L_c1_pub:")
    A("s_cmp_ge_u32 s32, 28")
    A("s_cbranch_scc1 L_qgather_wait2")
    A("s_lshl_b32 s60, s32, 12\ns_lshl_b32 s61, s31, 9\ns_add_u32 s60, s60, s61")
    A(f"s_add_u32 s60, s60, {WS_HP}")
    A("v_add_u32 v34, s60, v34")
    A("global_store_dwordx2 v34, v[32:33], s[28:29] sc1")
    A("s_branch L_qgather_wait2")

    A("L_qgather_wait:")
    A("s_waitcnt vmcnt(0)")
    A("v_readfirstlane_b32 s33, v63")
    A(f"s_add_u32 s33, s33, {PHI}")
    A("L_qgather_wait2:")
    g.wait_lds(F_PUB, 1, sleep=True)
    A("L_qgather:")
    A("v_lshrrev_b32 v4, 5, v0")
    A("s_lshl_b32 s60, s30, 1")
    A("v_add_u32 v4, s60, v4")
    A("v_and_b32 v5, 31, v0")
    A("v_lshlrev_b32 v6, 11, v4")
    A("v_lshl_add_u32 v6, v5, 4, v6")
    A("s_lshl_b32 s60, s31, 14")
    A(f"s_add_u32 s60, s60, {WS_QP}")
    A("v_add_u32 v6, s60, v6")
    Lq = g.label("qg"); Lqd = g.label("qgd")
    A(f"{Lq}:")
    for rc in range(4):
        A(f"global_load_dwordx4 v[{64+4*rc}:{67+4*rc}], v6, s[28:29] offset:{512*rc} sc1")
    A("s_waitcnt vmcnt(0)")
    g.check_tags([65, 67, 69, 71, 73, 75, 77, 79], Lqd, Lq, sleep=4)
    A(f"{Lqd}:")
    A("v_add_f32 v64, v64, v68\nv_add_f32 v66, v66, v70")
    A("v_add_f32 v64, v64, v72\nv_add_f32 v66, v66, v74")
    A("v_add_f32 v64, v64, v76\nv_add_f32 v66, v66, v78")
    A("v_cvt_pk_bf16_f32 v64, v64, v66")
    A("v_lshlrev_b32 v6, 7, v4")
    A("v_lshl_add_u32 v6, v5, 2, v6")
    A(f"v_add_u32 v6, {LDS_Q}, v6")
    A("ds_write_b32 v6, v64")
    A("s_waitcnt lgkmcnt(0)")
    A("s_mov_b64 exec, 1")
    A("v_mov_b32 v14, 1")
    A(f"ds_add_u32 v15, v14 offset:{F_Q}")
    A("s_mov_b64 exec, -1")
    g.stamp(7)
    A("s_cmp_lg_u32 s30, 1")
    A("s_cbranch_scc1 L_scores")
    A("s_cmp_ge_u32 s32, 28")
    A("s_cbranch_scc1 L_g_zero")
    A("v_lshrrev_b32 v4, 2, v0\nv_and_b32 v4, 7, v4\nv_lshlrev_b32 v4, 9, v4")
    A("v_and_b32 v5, 3, v0\nv_lshl_add_u32 v4, v5, 4, v4")
    A("s_lshl_b32 s60, s32, 12\ns_lshl_b32 s61, s31, 6\ns_add_u32 s60, s60, s61")
    A(f"s_add_u32 s60, s60, {WS_HP}")
    A("v_add_u32 v4, s60, v4")
    Lh = g.label("hg"); Lhd = g.label("hgd")
    A(f"{Lh}:")
    A("global_load_dwordx4 v[64:67], v4, s[28:29] sc1")
    A("s_waitcnt vmcnt(0)")
    g.check_tags([65, 67], Lhd, Lh, sleep=4)
    A(f"{Lhd}:")
    g.allreduce("add", 64, 68, [2, 3, 4])
    g.allreduce("add", 66, 68, [2, 3, 4])
    A("v_cvt_pk_bf16_f32 v64, v64, v66")
    A("v_lshlrev_b32 v65, 16, v64\nv_and_b32 v66, 0xffff0000, v64")
    A("v_lshlrev_b32 v67, 16, v60\nv_and_b32 v68, 0xffff0000, v60")
    A("v_add_f32 v65, v65, v67\nv_add_f32 v66, v66, v68")
    A("v_cvt_pk_bf16_f32 v64, v65, v66")
    A("v_lshlrev_b32 v65, 16, v64\nv_and_b32 v66, 0xffff0000, v64")
    k1 = 2*math.log2(math.e)*math.sqrt(2/math.pi)
    A(f"s_mov_b32 s60, {f2u(k1):#x}")
    A(f"s_mov_b32 s61, {f2u(0.044715):#x}")
    for r in (65, 66):
        A(f"v_mul_f32 v67, v{r}, v{r}")
        A(f"v_mul_f32 v67, v67, v{r}")
        A(f"v_fma_f32 v67, v67, s61, v{r}")
        A(f"v_mul_f32 v67, s60, v67")
        A("v_exp_f32 v67, v67")
        g.nop(1)
        A("v_add_f32 v67, 1.0, v67")
        A("v_rcp_f32 v67, v67")
        g.nop(1)
        A("v_sub_f32 v67, 1.0, v67")
        A(f"v_mul_f32 v{r}, v{r}, v67")
    A("v_cvt_pk_bf16_f32 v64, v65, v66")
    A("s_branch L_g_wr")
    A("L_g_zero:")
    A("v_mov_b32 v64, 0")
    A("L_g_wr:")
    A("v_and_b32 v4, 3, v0\nv_lshlrev_b32 v4, 2, v4")
    A(f"v_add_u32 v4, {LDS_G}, v4")
    A("ds_write_b32 v4, v64")
    A("s_waitcnt lgkmcnt(0)")
    g.set_lds(F_G, 1)

    A("L_scores:")
    g.wait_lds(F_Q, 4, sleep=True)
    g.stamp(8)
    A("v_and_b32 v4, 1, v0\nv_lshlrev_b32 v4, 9, v4")
    A("v_lshrrev_b32 v5, 4, v0")
    A("v_lshl_add_u32 v4, v5, 4, v4")
    A(f"v_add_u32 v4, {LDS_Q}, v4")
    for s in range(8):
        A(f"ds_read_b128 v[{16+4*s}:{19+4*s}], v4 offset:{64*s}")
    A("v_and_b32 v6, 15, v0")
    A("v_xor_b32 v7, v5, v6")
    for m in range(4):
        A(f"v_xor_b32 v{8+m}, {4*m}, v7")
        A(f"v_lshlrev_b32 v{8+m}, 4, v{8+m}")
        A(f"v_lshl_add_u32 v{8+m}, v6, 9, v{8+m}")
    g.wait_lds(F_K, 1, sleep=True)
    g.stamp(9)
    def kread(T):
        base = 64 + 32*(T & 1)
        for s in range(8):
            A(f"ds_read_b128 v[{base+4*s}:{base+4*s+3}], v{8+(s&3)} offset:{(s>>2)*256 + T*8192 + LDS_K}")
    kread(0)
    for T in range(8):
        if T < 7:
            kread(T+1)
            A("s_waitcnt lgkmcnt(8)")
        else:
            A("s_waitcnt lgkmcnt(0)")
        base = 64 + 32*(T & 1)
        D = 128 + 4*T
        for s in range(8):
            C = "0" if s == 0 else f"v[{D}:{D+3}]"
            A(f"v_mfma_f32_16x16x32_bf16 v[{D}:{D+3}], v[{base+4*s}:{base+4*s+3}], v[{16+4*s}:{19+4*s}], {C}")
    g.nop(8)
    for k in range(16):
        a, b = 128+2*k, 129+2*k
        A(f"v_cvt_pk_bf16_f32 v4, v{a}, v{b}")
        A(f"v_lshlrev_b32 v{a}, 16, v4")
        A(f"v_and_b32 v{b}, 0xffff0000, v4")
    A("v_max3_f32 v4, v128, v129, v130")
    for k in range(131, 159, 2):
        A(f"v_max3_f32 v4, v4, v{k}, v{k+1}")
    A("v_max_f32 v4, v4, v159")
    g.allreduce("max", 4, 5, [4, 5])
    cexp = math.log2(math.e)/16.0
    A(f"s_mov_b32 s65, {f2u(cexp):#x}")
    A("v_mul_f32 v5, s65, v4")
    for k in range(32):
        A(f"v_fma_f32 v{128+k}, v{128+k}, s65, -v5")
    for k in range(32):
        A(f"v_exp_f32 v{128+k}, v{128+k}")
    g.nop(1)
    A("v_add_f32 v6, v128, v129")
    for k in range(130, 160):
        A(f"v_add_f32 v6, v6, v{k}")
    g.allreduce("add", 6, 7, [4, 5])
    for s in range(4):
        for q in range(4):
            src = 128 + 8*s + 2*q
            A(f"v_cvt_pk_bf16_f32 v{160+4*s+q}, v{src}, v{src+1}")
    A("s_lshl_b32 s64, s31, 5\ns_add_u32 s64, s64, s32")
    A(f"s_mul_i32 s64, s64, {OP_STRIDE}")
    A(f"s_add_u32 s64, s64, {WS_OP}")
    A("s_cmp_lg_u32 s30, 0")
    Ls = g.label("nostat")
    A(f"s_cbranch_scc1 {Ls}")
    A("v_mov_b32 v5, s33\nv_mov_b32 v7, s33")
    A("v_lshlrev_b32 v12, 4, v0")
    A("s_add_u32 s60, s64, 4096")
    A("v_add_u32 v12, s60, v12")
    A("s_mov_b64 exec, 3")
    A("global_store_dwordx4 v12, v[4:7], s[28:29] sc1")
    A("s_mov_b64 exec, -1")
    A(f"{Ls}:")
    g.stamp(10)
    for t in range(4):
        A(f"s_mov_b32 s66, {0x00030003 << (2*t):#x}\ns_mov_b32 s67, s66")
        for s in range(4):
            for q in range(4):
                A(f"v_cndmask_b32 v{176+16*s+4*t+q}, 0, v{160+4*s+q}, s[66:67]")
    A("v_lshrrev_b32 v4, 2, v0")
    A("v_and_b32 v5, 7, v4")
    A("v_and_b32 v6, 3, v0\nv_lshlrev_b32 v6, 3, v6")
    A("v_lshl_add_u32 v6, v4, 9, v6")
    A(f"v_add_u32 v6, {LDS_V}, v6")
    A("s_lshl_b32 s60, s30, 2")
    for t in range(4):
        A(f"s_add_u32 s61, s60, {t}")
        A(f"v_xor_b32 v{8+t}, s61, v5")
        A(f"v_lshl_add_u32 v{8+t}, v{8+t}, 5, v6")
    A("v_and_b32 v4, 1, v0\nv_lshlrev_b32 v4, 4, v4")
    A("v_bfe_u32 v5, v0, 1, 3")
    A("v_add_u32 v4, v4, v5")
    A("v_add_u32 v4, s60, v4")
    A("v_lshlrev_b32 v4, 7, v4")
    A("v_lshrrev_b32 v5, 4, v0\nv_lshl_add_u32 v4, v5, 5, v4")
    A("v_add_u32 v12, s64, v4")
    for r in (245, 247, 249, 251):
        A(f"v_mov_b32 v{r}, s33")
    A("v_lshrrev_b32 v4, 3, v0\nv_lshlrev_b32 v4, 2, v4\nv_and_b32 v5, 3, v0\nv_add_u32 v4, v4, v5")
    A(f"s_movk_i32 s60, {OP_STRIDE}")
    A("v_mul_lo_u32 v4, v4, s60")
    A(f"s_mul_i32 s61, s31, {32*OP_STRIDE}")
    A(f"s_add_u32 s61, s61, {WS_OP}")
    A("v_add_u32 v4, s61, v4")
    A("v_bfe_u32 v5, v0, 2, 1\nv_lshlrev_b32 v5, 6, v5")
    A("s_lshl_b32 s60, s32, 7")
    A("v_add3_u32 v13, v4, v5, s60")
    A("s_lshr_b32 s60, s32, 4\ns_lshl_b32 s60, s60, 4\ns_add_u32 s60, s60, 4096")
    A("v_add_u32 v61, s60, v4")
    g.wait_lds(F_G, 1, sleep=True)
    A(f"v_mov_b32 v4, {LDS_G}")
    A("ds_read_b128 v[4:7], v4")
    A("s_waitcnt lgkmcnt(0)")
    for k in range(4):
        A(f"v_readfirstlane_b32 s{40+k}, v{4+k}")
    for s in range(4):
        g.wait_lds(F_V, s+1, sleep=(s < 3))
        if s == 3: g.stamp(11)
        for t in range(4):
            A(f"ds_read_b64_tr_b16 v[{64+4*t}:{65+4*t}], v{8+t} offset:{s*16384}")
            A(f"ds_read_b64_tr_b16 v[{66+4*t}:{67+4*t}], v{8+t} offset:{s*16384+8192}")
        for t in range(4):
            A(f"s_waitcnt lgkmcnt({6-2*t})")
            C = "0" if (s == 0 and t == 0) else "v[240:243]"
            b = 176+16*s+4*t
            A(f"v_mfma_f32_16x16x32_bf16 v[240:243], v[{64+4*t}:{67+4*t}], v[{b}:{b+3}], {C}")
    g.nop(8)
    A("v_mov_b32 v244, v240\nv_mov_b32 v246, v241\nv_mov_b32 v248, v242\nv_mov_b32 v250, v243")
    A("s_mov_b32 exec_lo, 0x00ff00ff\ns_mov_b32 exec_hi, 0x00ff00ff")
    A("global_store_dwordx4 v12, v[244:247], s[28:29] sc1")
    A("global_store_dwordx4 v12, v[248:251], s[28:29] offset:16 sc1")
    A("s_mov_b64 exec, -1")
    A("s_mul_i32 s60, s30, 56")
    A("v_add_u32 v4, s60, v0")
    A("v_lshlrev_b32 v62, 4, v4")
    A("v_lshlrev_b32 v4, 2, v4")
    A(f"v_add_u32 v4, {LDS_W}, v4")
    A("s_waitcnt vmcnt(0)")
    g.stamp(12)
    Lc = g.label("cg"); Lcd = g.label("cgd")
    def cloads():
        for q in range(4):
            A(f"global_load_dwordx4 v[{64+4*q}:{67+4*q}], v13, s[28:29] offset:{16*q} sc1")
        A("global_load_dwordx4 v[80:83], v61, s[28:29] sc1")
    cloads()
    g.wait_lds(F_W, 1, sleep=False)
    for r in range(24):
        A(f"ds_read_b32 v{96+r}, v4 offset:{896*r}")
    A("s_mov_b32 s60, 0x05040100\ns_mov_b32 s61, 0x07060302")
    A("s_waitcnt lgkmcnt(0)")
    for k in range(12):
        A(f"v_perm_b32 v{128+k}, v{97+2*k}, v{96+2*k}, s60")
        A(f"v_perm_b32 v{144+k}, v{97+2*k}, v{96+2*k}, s61")
    A("v_mov_b32 v240, 0\nv_mov_b32 v241, 0\nv_mov_b32 v242, 0\nv_mov_b32 v243, 0")
    for k in range(4):
        A(f"v_dot2_f32_bf16 v{240+(k&1)}, v{136+k}, s{40+k}, v{240+(k&1)}")
        A(f"v_dot2_f32_bf16 v{242+(k&1)}, v{152+k}, s{40+k}, v{242+(k&1)}")
    A("s_branch " + Lc + "_chk")
    A(f"{Lc}:")
    cloads()
    A(f"{Lc}_chk:")
    A("s_waitcnt vmcnt(0)")
    g.check_tags([65, 67, 69, 71, 73, 75, 77, 79, 81, 83], Lcd, Lc, sleep=0)
    A(f"{Lcd}:")
    g.stamp(13)
    A("v_mov_b32 v84, v80")
    g.allreduce("max", 84, 85, [0, 1, 3, 4, 5])
    A("v_sub_f32 v84, v80, v84")
    A("v_mul_f32 v84, s65, v84")
    A("v_exp_f32 v84, v84")
    g.nop(1)
    A("v_mul_f32 v85, v84, v82")
    for q in range(4):
        A(f"v_mul_f32 v{88+2*q}, v84, v{64+4*q}")
        A(f"v_mul_f32 v{89+2*q}, v84, v{66+4*q}")
    g.allreduce("add", 85, 86, [0, 1, 3, 4, 5])
    g.scatter8(88, 86)
    g.allreduce("add", 88, 86, [0, 1])
    A("v_rcp_f32 v85, v85")
    g.nop(1)
    A("v_mul_f32 v88, v88, v85")
    g.nop(2)
    A("v_mov_b32_dpp v89, v88 row_ror:8 row_mask:0xf bank_mask:0xf")
    A("v_cvt_pk_bf16_f32 v88, v88, v89")
    g.nop(1)
    for k in range(8):
        A(f"v_readlane_b32 s{4+k}, v88, {16*(k&3) + 4*(k>>2)}")
    g.nop(2)
    for k in range(8):
        A(f"v_dot2_f32_bf16 v{240+(k&1)}, v{128+k}, s{4+k}, v{240+(k&1)}")
        A(f"v_dot2_f32_bf16 v{242+(k&1)}, v{144+k}, s{4+k}, v{242+(k&1)}")
    g.nop(4)
    A("v_add_f32 v244, v240, v241\nv_add_f32 v246, v242, v243")
    A(f"s_mul_i32 s60, s2, {PP_STRIDE}")
    A(f"s_add_u32 s60, s60, {WS_PP}")
    A("v_add_u32 v62, s60, v62")
    A("s_mov_b32 exec_lo, -1\ns_mov_b32 exec_hi, 0x00ffffff")
    A("global_store_dwordx4 v62, v[244:247], s[28:29] sc1")
    A("s_mov_b64 exec, -1")
    A("s_cmp_lg_u32 s30, 0")
    A("s_cbranch_scc1 L_fin")
    A("s_cmp_ge_u32 s51, 28")
    A("s_cbranch_scc1 L_fin")
    A(f"s_movk_i32 s60, {PP_STRIDE}")
    A("v_mul_lo_u32 v4, v0, s60")
    A("s_lshl_b32 s60, s51, 7\ns_lshl_b32 s61, s52, 4\ns_add_u32 s60, s60, s61")
    A(f"s_add_u32 s60, s60, {WS_PP}")
    A("v_add_u32 v4, s60, v4")
    for i in range(1, 4):
        A(f"v_add_u32 v{4+i}, {i*64*PP_STRIDE}, v4")
    A("s_waitcnt vmcnt(0)")
    Ld = g.label("dg"); Ldd = g.label("dgd")
    A(f"{Ld}:")
    for i in range(4):
        A(f"global_load_dwordx4 v[{64+4*i}:{67+4*i}], v{4+i}, s[28:29] sc1")
    A("s_waitcnt vmcnt(0)")
    g.check_tags([65, 67, 69, 71, 73, 75, 77, 79], Ldd, Ld, sleep=0)
    A(f"{Ldd}:")
    A("v_add_f32 v64, v64, v68\nv_add_f32 v72, v72, v76\nv_add_f32 v66, v66, v70\nv_add_f32 v74, v74, v78")
    A("v_add_f32 v64, v64, v72\nv_add_f32 v66, v66, v74")
    g.allreduce("add", 64, 68, [0, 1, 2, 3, 4, 5])
    g.allreduce("add", 66, 68, [0, 1, 2, 3, 4, 5])
    A("s_lshl_b32 s60, s55, 16\ns_and_b32 s61, s55, 0xffff0000")
    A("v_add_f32 v64, s60, v64\nv_add_f32 v66, s61, v66")
    A("s_lshl_b32 s60, s56, 16\ns_and_b32 s61, s56, 0xffff0000")
    A("v_add_f32 v64, s60, v64\nv_add_f32 v66, s61, v66")
    A("v_cvt_pk_bf16_f32 v64, v64, v66")
    A("v_mov_b32 v4, s53")
    A("s_mov_b64 exec, 1")
    A("global_store_dword v4, v64, s[24:25]")
    A("s_cmp_lg_u32 s2, 0")
    A("s_cbranch_scc1 L_fin")
    A("v_mov_b32 v4, 0\nv_mov_b32 v5, s33")
    A("global_store_dword v4, v5, s[28:29] sc1")
    A("L_fin:")
    g.stamp(3)
    if dbg:
        A("s_cmp_lg_u32 s30, 0")
        A("s_cbranch_scc1 L_fin2")
        A("s_memrealtime s[96:97]")
        A("s_waitcnt lgkmcnt(0)")
        A("s_mov_b64 exec, 1")
        A("s_not_b32 s98, s98")
        A("v_mov_b32 v4, 0\nv_mov_b32 v6, s96\nv_mov_b32 v8, s98")
        A("global_atomic_umax v4, v6, s[26:27]")
        A("global_atomic_umax v4, v8, s[26:27] offset:4")
        A("s_cmp_lg_u32 s2, 0")
        A("s_cbranch_scc1 L_fin2")
        A("s_not_b32 s98, s98")
        A("v_mov_b32 v7, s98")
        A("global_store_dwordx2 v4, v[6:7], s[26:27] offset:8")
        A("L_fin2:")
    g.flush_stamps()
    A("s_endpgm")

    A("L_loader:")
    A("v_mov_b32 v4, 0\nv_mov_b32 v5, 0\nv_mov_b32 v6, 0\nv_mov_b32 v7, 0")
    A("ds_write_b128 v15, v[4:7]")
    A("ds_write_b128 v15, v[4:7] offset:16")
    A("v_lshrrev_b32 v1, 5, v0")
    A("v_and_b32 v2, 31, v0")
    A("v_xor_b32 v3, v2, v1")
    A("v_lshlrev_b32 v3, 4, v3")
    A("v_lshl_add_u32 v3, v1, 9, v3")
    for b in range(8):
        A(f"v_xor_b32 v{16+b}, {(2*b) << 4}, v3")
    A("v_lshlrev_b32 v3, 1, v1")
    A("v_xor_b32 v3, v2, v3")
    A("v_lshlrev_b32 v3, 4, v3")
    A("v_lshl_add_u32 v3, v1, 9, v3")
    for b in range(4):
        A(f"v_xor_b32 v{24+b}, {((2*b) & 7) << 5}, v3")
    A("v_lshlrev_b32 v28, 4, v0")
    A("s_lshl_b32 s44, s31, 25\ns_add_u32 s44, s44, 0x1e00000\ns_lshl_b32 s45, s32, 16\ns_add_u32 s44, s44, s45")
    A("s_lshl_b32 s45, s31, 5\ns_add_u32 s45, s45, s32")
    A(f"s_mul_i32 s45, s45, {16*896}")
    A("s_min_u32 s46, s2, 223")
    A(f"s_mul_i32 s46, s46, {8*896}")
    A("s_waitcnt lgkmcnt(0)")
    def srd(d, lo, hi, off, n):
        A(f"s_add_u32 s{d}, s{lo}, s{off}\ns_addc_u32 s{d+1}, s{hi}, 0\ns_and_b32 s{d+1}, s{d+1}, 0xffff")
        A(f"s_mov_b32 s{d+2}, {n}\ns_mov_b32 s{d+3}, 0x20000")
    srd(36, 6, 7, 44, 65536)
    srd(40, 8, 9, 44, 65536)
    srd(48, 12, 13, 45, 16*896)
    srd(52, 20, 21, 46, 8*896)
    A("s_barrier")
    g.stamp(1)
    groups = []
    for k in range(16):
        groups.append([(36, 16 + (4*k + i) % 8, LDS_K + 4096*k, 4096*k, 1024*i) for i in range(4)])
    for k in range(16):
        groups.append([(40, 24 + i, LDS_V + 4096*k, 4096*k, 1024*i) for i in range(4)])
    for k in range(4):
        n = 4 if k < 3 else 2
        groups.append([(48, 28, LDS_W + 4096*k, 4096*k, 1024*i) for i in range(n)])
    for k in range(2):
        n = 4 if k < 1 else 3
        groups.append([(52, 28, LDS_W + 14336 + 4096*k, 4096*k, 1024*i) for i in range(n)])
    total = sum(len(x) for x in groups)
    events = [(64, F_K, 1, 2), (80, F_V, 1, None), (96, F_V, 2, None), (112, F_V, 3, None), (128, F_V, 4, 3), (total, F_W, 1, 4)]
    issued = 0
    ev = 0
    for gi, grp in enumerate(groups):
        A(f"s_mov_b32 m0, {grp[0][2]}")
        A(f"s_mov_b32 s56, {grp[0][3]}")
        for (sr, va, lb, so, io) in grp:
            A(f"buffer_load_dwordx4 v{va}, s[{sr}:{sr+3}], s56 offen offset:{io} {nt} lds")
            issued += 1
        if issued > window and gi < len(groups) - 1:
            A(f"s_waitcnt vmcnt({window})")
            done = issued - window
            while ev < len(events) and events[ev][0] <= done:
                g.set_lds(events[ev][1], events[ev][2])
                if events[ev][3] is not None: g.stamp(events[ev][3])
                ev += 1
    g.stamp(5)
    while ev < len(events):
        A(f"s_waitcnt vmcnt({total - events[ev][0]})")
        g.set_lds(events[ev][1], events[ev][2])
        if events[ev][3] is not None: g.stamp(events[ev][3])
        ev += 1
    A("s_waitcnt lgkmcnt(0)")
    g.flush_stamps()
    A("L_end:")
    A("s_endpgm")
    A('.section .rodata,"a"')
    A(".p2align 6")
    A(f".amdhsa_kernel {KN}")
    A("  .amdhsa_next_free_vgpr 256")
    A("  .amdhsa_next_free_sgpr 102")
    A("  .amdhsa_accum_offset 256")
    A("  .amdhsa_group_segment_fixed_size 0")
    A("  .amdhsa_kernarg_size 104")
    A("  .amdhsa_user_sgpr_count 2")
    A("  .amdhsa_user_sgpr_kernarg_segment_ptr 1")
    A("  .amdhsa_system_sgpr_workgroup_id_x 1")
    A(".end_amdhsa_kernel")
    return "\n".join(g.L) + "\n"

HEADER = open("cdna_kernels/" + NAME + ".s.ref").read().split("; Override launch")[0] if False else ""

if __name__ == "__main__":
    import argparse
    ap = argparse.ArgumentParser()
    ap.add_argument("-o", default="cdna_kernels/" + NAME + ".s")
    ap.add_argument("--stamps", action="store_true")
    ap.add_argument("--window", type=int, default=24)
    ap.add_argument("--nt", default="nt")
    ap.add_argument("--dbg", action="store_true")
    a = ap.parse_args()
    open(a.o, "w").write(build(a.stamps, a.window, a.nt, a.dbg))
    print("wrote", a.o)
```

```python
def make(gen, wave, idx, red, mult=10, nw=5, **kw):
    base = gen.build(stamps=True, **kw)
    KN = gen.KN
    body = []
    A = body.append
    A(".globl probe_kernel\n.p2align 8\n.type probe_kernel,@function\nprobe_kernel:")
    A("s_cmp_ge_u32 s2, 1\ns_cbranch_scc1 L_pend")
    A("s_load_dwordx2 s[28:29], s[0:1], 96")
    A(f"v_mul_u32_u24 v1, {nw*128}, v0")
    A(f"v_add_u32 v1, {gen.WS_STAMP}, v1")
    A("s_waitcnt lgkmcnt(0)")
    for i in range(4):
        A(f"v_add_u32 v{10+i}, {i*64*nw*128}, v1")
        A(f"global_load_dword v{20+i}, v{10+i}, s[28:29] offset:{wave*128 + idx*4} sc1")
        A(f"global_load_dword v{24+i}, v{10+i}, s[28:29] offset:0 sc1")
    A("s_waitcnt vmcnt(0)")
    A("v_readfirstlane_b32 s4, v24")
    A("s_nop 3")
    for i in range(4):
        A(f"v_subrev_u32 v{20+i}, s4, v{20+i}")
        A(f"v_subrev_u32 v{24+i}, s4, v{24+i}")
    op = f"v_{red}_i32"
    A(f"{op} v20, v20, v21\n{op} v22, v22, v23\n{op} v20, v20, v22")
    A("v_min_i32 v24, v24, v25\nv_min_i32 v26, v26, v27\nv_min_i32 v24, v24, v26")
    for (o, r) in ((op, 20), ("v_min_i32", 24)):
        for sel in ["quad_perm:[1,0,3,2]", "quad_perm:[2,3,0,1]", "row_ror:4", "row_ror:8"]:
            A("s_nop 1")
            A(f"{o}_dpp v{r}, v{r}, v{r} {sel} row_mask:0xf bank_mask:0xf")
        for w in (16, 32):
            A(f"v_mov_b32 v30, v{r}\ns_nop 1\nv_permlane{w}_swap_b32 v{r}, v30\ns_nop 1\n{o} v{r}, v{r}, v30")
    A("v_sub_u32 v20, v20, v24")
    A("s_nop 1")
    A("v_readfirstlane_b32 s5, v20")
    A("s_nop 3")
    A(f"s_mul_i32 s5, s5, {mult}")
    A("s_min_u32 s5, s5, 100000")
    A("s_memrealtime s[6:7]")
    A("s_waitcnt lgkmcnt(0)")
    A("L_pspin:")
    A("s_memrealtime s[8:9]")
    A("s_waitcnt lgkmcnt(0)")
    A("s_sub_u32 s10, s8, s6")
    A("s_cmp_lt_u32 s10, s5")
    A("s_cbranch_scc1 L_pspin")
    A("L_pend:\ns_endpgm")
    out = []
    for l in base.split("\n"):
        if l.startswith("; @launch"):
            rest = l.split("@launch", 1)[1].strip()
            out.append(f"; @launch kernel={KN} {rest}")
            out.append("; @launch kernel=probe_kernel grid=(1,1,1) block=(64,1,1) lds=0")
        elif l.startswith('.section .rodata'):
            out += body
            out.append(l)
        else:
            out.append(l)
    s = "\n".join(out)
    s += """
.p2align 6
.amdhsa_kernel probe_kernel
  .amdhsa_next_free_vgpr 32
  .amdhsa_next_free_sgpr 32
  .amdhsa_accum_offset 32
  .amdhsa_group_segment_fixed_size 0
  .amdhsa_kernarg_size 104
  .amdhsa_user_sgpr_count 2
  .amdhsa_user_sgpr_kernarg_segment_ptr 1
  .amdhsa_system_sgpr_workgroup_id_x 1
.end_amdhsa_kernel
"""
    return s
if __name__ == "__main__":
    import sys, importlib
    gen = importlib.import_module(sys.argv[1])
    for spec in sys.argv[2:]:
        name, wave, idx, red, mult = spec.split(":")
        open(f"exp/{name}.s", "w").write(make(gen, int(wave), int(idx), red, int(mult)))
```

```python
import sys, math, struct
from gen1 import Gen, f2u, NAME, KN, PHI

LDS_K = 0
LDS_V = 65536
LDS_W = 131072
LDS_XN = 152576
LDS_Q = 153600
LDS_PX = 154624
LDS_ZX = 155136
LDS_SX = 155648
LDS_G = 155712
LDS_FL = 155776
LDS_SIZE = 155904
F_K, F_V, F_W, F_Q, F_PUB, F_G, F_P = 0, 4, 8, 12, 16, 20, 24

WS_QP = 0x10000
WS_HP = 0x40000
WS_OP = 0x100000
OP_STRIDE = 4224
WS_PP = 0x300000
PP_STRIDE = 3584
WS_STAMP = 0x800000
NW = 6
SLOW = 0x1000000
FB_AFTER = 12

class Gen2(Gen):
    def wait_lds(self, off, val, sleep=2):
        L = self.label("wl"); D = self.label("wld")
        sleep = int(sleep)
        self(f"{L}:")
        self(f"ds_read_b32 v14, v15 offset:{off}")
        self("s_waitcnt lgkmcnt(0)")
        self("v_readfirstlane_b32 s58, v14")
        self(f"s_cmp_ge_u32 s58, {val}")
        self(f"s_cbranch_scc1 {D}")
        if sleep: self(f"s_sleep {sleep}")
        self.timeout(L)
        self(f"{D}:")
    def flush_stamps(self, n=14):
        if not self.stamps: return
        self("s_waitcnt lgkmcnt(0)")
        self("s_mov_b64 exec, 1")
        self(f"s_mul_i32 s60, s2, {NW}")
        self("s_add_u32 s60, s60, s30")
        self("s_lshl_b32 s60, s60, 7")
        self(f"s_add_u32 s60, s60, {WS_STAMP}")
        self("v_mov_b32 v1, s60")
        for i in range(n):
            self(f"v_mov_b32 v2, s{70+2*i}")
            self(f"global_store_dword v1, v2, s[28:29] offset:{4*i}")
            self("s_nop 1")
        self("s_mov_b64 exec, -1")
    def poll(self, loads, tagregs, sleep, first_issued=False, between=None, addr=None, diag=None, cnt=None, after_first=None, nafter=0):
        g = self
        L = g.label("pl"); C = g.label("pc"); D = g.label("pd"); N = g.label("pn")
        if addr: g("s_mov_b32 s68, 0")
        C2 = g.label("pc2")
        if first_issued:
            if between: between()
            g(f"s_waitcnt vmcnt({nafter})")
            g(f"s_branch {C2}")
        elif after_first:
            loads()
            after_first()
            g(f"s_waitcnt vmcnt({nafter})")
            g(f"s_branch {C2}")
        g(f"{L}:")
        loads()
        g(f"{C}:")
        g("s_waitcnt vmcnt(0)")
        g(f"{C2}:")
        if diag is not None and g.stamps:
            F = g.label("pf")
            g("s_cmp_lg_u32 s68, 0")
            g(f"s_cbranch_scc1 {F}")
            g.stamp(diag)
            g(f"{F}:")
        first = True
        for r in tagregs:
            g(f"v_cmp_ne_u32 vcc, s33, v{r}")
            g("s_mov_b64 s[62:63], vcc" if first else "s_or_b64 s[62:63], s[62:63], vcc")
            first = False
        g("s_and_b64 exec, s[62:63], s[62:63]")
        g(f"s_cbranch_scc0 {D}")
        if sleep: g(f"s_sleep {sleep}")
        if addr:
            g("s_add_u32 s68, s68, 1")
            g(f"s_cmp_lt_u32 s68, {FB_AFTER}")
            g(f"s_cbranch_scc1 {N}")
            for a in addr: g(f"v_xor_b32 v{a}, {SLOW:#x}, v{a}")
            g(f"{N}:")
        g.timeout(L)
        g(f"{D}:")
        g("s_mov_b64 exec, -1")
        if cnt is not None and g.stamps:
            g("s_waitcnt lgkmcnt(0)")
            g(f"s_mul_i32 s{70+2*cnt}, s68, 100")
            g(f"s_add_u32 s{70+2*cnt}, s{70+2*cnt}, s70")

def build(prv=1, tail=False, dlA=6, xstat=False, nostat=False, stf='sc1', prewarm=0, cut=0, noinit=False, stamps=False, window=24, nt="nt", dbg=False, prefetch=True, slC=4, slD=4, slA=8):
    A = g = Gen2(stamps, window, nt)
    _st = g.stamp
    def early(i):
        if not tail: _st(i)
    def late(i):
        if tail: _st(i)
    A(f"; @launch grid=(256,1,1) block=({NW*64},1,1) lds={LDS_SIZE}")
    A('.amdgcn_target "amdgcn-amd-amdhsa--gfx950"')
    A(".text")
    A(f".globl {KN}")
    A(".p2align 8")
    A(f".type {KN},@function")
    A(f"{KN}:")
    g.stamp(0)
    A("s_load_dwordx16 s[4:19], s[0:1], 0")
    A("s_load_dwordx8 s[20:27], s[0:1], 64")
    A("s_load_dwordx2 s[28:29], s[0:1], 96")
    A("s_cmp_ge_u32 s2, 256")
    A("s_cbranch_scc1 L_end")
    A("v_lshrrev_b32 v1, 6, v0")
    A("v_and_b32 v0, 63, v0")
    A("v_readfirstlane_b32 s30, v1")
    A("s_and_b32 s31, s2, 7")
    A("s_lshr_b32 s32, s2, 3")
    A("s_mov_b32 s59, 0")
    A(f"v_mov_b32 v15, {LDS_FL}")
    A("s_cmp_eq_u32 s30, 4")
    A("s_cbranch_scc1 L_loader")
    A("s_lshr_b32 s51, s32, 1\ns_lshl_b32 s51, s51, 3\ns_add_u32 s51, s51, s31")
    A("s_and_b32 s52, s32, 1")
    A("s_min_u32 s53, s51, 27")
    A("s_lshl_b32 s53, s53, 5\ns_lshl_b32 s54, s52, 4\ns_add_u32 s53, s53, s54")
    A("v_lshrrev_b32 v2, 3, v0")
    A("v_and_b32 v3, 7, v0")
    A("v_mov_b32 v63, 0")
    A("v_mov_b32 v102, 0")
    A("s_cmp_eq_u32 s30, 5")
    A("s_cbranch_scc1 L_f_par")
    A("s_cmp_lg_u32 s30, 0")
    A("s_cbranch_scc1 L_c123_pre")
    A("s_and_b32 s46, s32, 3")
    A("s_mul_i32 s46, s46, 112")
    A("s_lshl_b32 s44, s46, 13")
    A("s_lshr_b32 s47, s32, 2")
    A("s_lshl_b32 s47, s47, 7")
    A("s_add_u32 s44, s44, s47")
    A("s_lshl_b32 s47, s31, 10")
    A("s_add_u32 s44, s44, s47")
    A("s_movk_i32 s45, 8192")
    A(f"s_mov_b32 s47, {448*4096*2}")
    A("s_waitcnt lgkmcnt(0)")
    A("s_mov_b32 s48, s10")
    A("s_mov_b32 s49, s11")
    A("s_branch L_c01_ld")
    A("L_f_par:")
    A("s_and_b32 s46, s32, 7")
    A("s_mul_i32 s46, s46, 56")
    A("s_mul_i32 s44, s46, 3584")
    A("s_lshl_b32 s47, s31, 2\ns_lshr_b32 s48, s32, 3\ns_add_u32 s47, s47, s48")
    A("s_min_u32 s47, s47, 27")
    A("s_lshl_b32 s47, s47, 7")
    A("s_add_u32 s44, s44, s47")
    A("s_movk_i32 s45, 3584")
    A(f"s_mov_b32 s47, {448*1792*2}")
    A("s_waitcnt lgkmcnt(0)")
    A("s_mov_b32 s48, s16")
    A("s_mov_b32 s49, s17")
    A("L_c01_ld:")
    A("s_mov_b32 s40, s4\ns_and_b32 s41, s5, 0xffff\ns_movk_i32 s42, 896\ns_mov_b32 s43, 0x20000")
    A("v_lshlrev_b32 v4, 4, v0")
    A("buffer_load_dwordx4 v[16:19], v4, s[40:43], 0 offen")
    A("s_add_u32 s36, s48, s44\ns_addc_u32 s37, s49, 0\ns_and_b32 s37, s37, 0xffff")
    A("s_sub_u32 s38, s47, s44\ns_mov_b32 s39, 0x20000")
    A("v_mul_lo_u32 v5, v2, s45")
    A("v_lshl_add_u32 v5, v3, 4, v5")
    A("s_lshl_b32 s45, s45, 3")
    A("s_mov_b32 s50, 0")
    for i in range(7):
        if not noinit: A(f"buffer_load_dwordx4 v[{64+4*i}:{67+4*i}], v5, s[36:39], s50 offen {nt}")
        A("s_add_u32 s50, s50, s45")
    A("s_cmp_eq_u32 s30, 5")
    A("s_cbranch_scc1 L_f_ld2")
    for i in range(7, 14):
        if not noinit: A(f"buffer_load_dwordx4 v[{64+4*i}:{67+4*i}], v5, s[36:39], s50 offen {nt}")
        A("s_add_u32 s50, s50, s45")
    A("global_load_dword v63, v63, s[28:29] sc1")
    A("v_and_b32 v6, 3, v0")
    A("v_lshl_add_u32 v6, v6, 2, s53")
    A("global_load_dword v248, v6, s[4:5]")
    A("global_load_dword v249, v6, s[22:23]")
    A("s_branch L_c_bar0")
    A("L_f_ld2:")
    A("global_load_dword v63, v63, s[28:29] sc1")
    A("s_lshl_b32 s57, s31, 5\ns_add_u32 s57, s57, s32")
    A("s_min_u32 s57, s57, 223")
    A("s_lshl_b32 s57, s57, 4")
    A("v_and_b32 v6, 3, v0")
    A("v_lshl_add_u32 v6, v6, 2, s57")
    A("global_load_dword v60, v6, s[18:19]")
    A("s_branch L_c_bar0")
    A("L_c123_pre:")
    A("s_waitcnt lgkmcnt(0)")
    A("global_load_dword v63, v63, s[28:29] sc1")
    if prefetch:
        A("s_cmp_lg_u32 s30, 3")
        A("s_cbranch_scc1 L_c_bar0")
        A("s_getpc_b64 s[60:61]")
        A("L_pf:")
        A("v_lshlrev_b32 v4, 7, v0")
        A("v_min_u32 v5, L_end-L_pf, v4")
        A("global_load_dword v6, v5, s[60:61]")
        A("v_add_u32 v4, 0x2000, v4")
        A("v_min_u32 v5, L_end-L_pf, v4")
        A("global_load_dword v7, v5, s[60:61]")
    A("L_c_bar0:")
    A("s_barrier")
    g.stamp(1)
    if cut == 1: A("s_endpgm")
    A("s_cmp_eq_u32 s30, 0")
    A("s_cbranch_scc1 L_ln")
    A("s_cmp_lg_u32 s30, 5")
    A("s_cbranch_scc1 L_common")

    A("L_ln:")
    A("s_waitcnt vmcnt(9)")
    g.stamp(2)
    for k in range(4):
        A(f"v_lshlrev_b32 v{20+2*k}, 16, v{16+k}")
        A(f"v_and_b32 v{21+2*k}, 0xffff0000, v{16+k}")
    A("v_add_f32 v28, v20, v21\nv_add_f32 v29, v22, v23\nv_add_f32 v30, v24, v25\nv_add_f32 v31, v26, v27")
    A("v_add_f32 v28, v28, v29\nv_add_f32 v30, v30, v31\nv_add_f32 v28, v28, v30")
    g.allreduce("add", 28, 29, [0, 1, 2, 3, 4, 5])
    A(f"s_mov_b32 s60, {f2u(1.0/448):#x}")
    A(f"s_mov_b32 s61, {f2u(448.0):#x}")
    A("v_mul_f32 v29, s60, v28")
    A("v_fma_f32 v30, -v29, s61, v28")
    A("v_fma_f32 v29, v30, s60, v29")
    A("v_mov_b32 v30, 0")
    for k in range(8):
        A(f"v_sub_f32 v31, v{20+k}, v29")
        A("v_fmac_f32 v30, v31, v31")
    A("v_cmp_gt_u32 vcc, 56, v0")
    g.nop(2)
    A("v_cndmask_b32 v30, 0, v30, vcc")
    g.allreduce("add", 30, 31, [0, 1, 2, 3, 4, 5])
    A("v_mul_f32 v31, s60, v30")
    A("v_fma_f32 v32, -v31, s61, v30")
    A("v_fma_f32 v31, v32, s60, v31")
    g.bf16r(29, 29)
    g.bf16r(31, 31)
    A(f"v_add_f32 v31, {f2u(1e-5):#x}, v31")
    g.bf16r(31, 31)
    A("v_sqrt_f32 v31, v31")
    g.nop(1)
    g.bf16r(31, 31)
    A("v_rcp_f32 v32, v31")
    g.nop(1)
    for k in range(4):
        a, b = 20+2*k, 21+2*k
        A(f"v_sub_f32 v{a}, v{a}, v29")
        A(f"v_sub_f32 v{b}, v{b}, v29")
        A(f"v_cvt_pk_bf16_f32 v33, v{a}, v{b}")
        A(f"v_lshlrev_b32 v{a}, 16, v33")
        A(f"v_and_b32 v{b}, 0xffff0000, v33")
        for r in (a, b):
            A(f"v_mul_f32 v34, v{r}, v32")
            A(f"v_fma_f32 v35, -v34, v31, v{r}")
            A(f"v_fma_f32 v{r}, v35, v32, v34")
        A(f"v_cvt_pk_bf16_f32 v{16+k}, v{a}, v{b}")
    A("v_lshlrev_b32 v4, 4, v0")
    A(f"v_add_u32 v4, {LDS_XN}, v4")
    A("ds_write_b128 v4, v[16:19]")
    A("v_add_u32 v6, s46, v2")
    A("v_lshlrev_b32 v6, 1, v6")
    A(f"v_add_u32 v6, {LDS_XN}, v6")
    A("s_waitcnt lgkmcnt(0)")
    for i in range(14):
        A(f"ds_read_u16 v{40+i}, v6 offset:{16*i}")
    for k in range(8):
        A(f"v_mov_b32 v{32+k}, 0")
    A("s_waitcnt vmcnt(0) lgkmcnt(0)")
    early(4)
    def gemv_steps(lo, hi):
        for i in range(lo, hi):
            t = 54 + (i & 1)
            A(f"v_lshlrev_b32 v{t}, 16, v{40+i}")
            for j in range(4):
                A(f"v_dot2_f32_bf16 v{32+2*j}, v{64+4*i+j}, v{40+i}, v{32+2*j}")
            for j in range(4):
                A(f"v_dot2_f32_bf16 v{33+2*j}, v{64+4*i+j}, v{t}, v{33+2*j}")
    gemv_steps(0, 7)
    A("s_cmp_eq_u32 s30, 5")
    A("s_cbranch_scc1 L_gemv_red")
    gemv_steps(7, 14)
    A("L_gemv_red:")
    g.nop(4)
    g.scatter8(32, 42)
    A("v_readfirstlane_b32 s33, v63")
    A(f"s_add_u32 s33, s33, {PHI}")
    A("v_mov_b32 v33, s33")
    A("v_lshlrev_b32 v34, 6, v3")
    A("v_lshl_add_u32 v34, v2, 3, v34")
    A("s_cmp_eq_u32 s30, 5")
    A("s_cbranch_scc1 L_f_pub")
    A("s_lshl_b32 s60, s31, 14\ns_lshl_b32 s61, s32, 9\ns_add_u32 s60, s60, s61")
    A(f"s_add_u32 s60, s60, {WS_QP}")
    A("v_add_u32 v34, s60, v34")
    A("global_store_dwordx2 v34, v[32:33], s[28:29]")
    A(f"v_add_u32 v102, {SLOW:#x}, v34")
    A("v_mov_b32 v100, v32\nv_mov_b32 v101, v33")
    early(5)
    A("s_branch L_common2")

    A("L_f_pub:")
    A("s_cmp_eq_u32 s31, 7")
    A("s_cbranch_scc1 L_g_zero")
    A("s_lshl_b32 s60, s31, 5\ns_add_u32 s60, s60, s32\ns_lshl_b32 s60, s60, 9")
    A(f"s_add_u32 s60, s60, {WS_HP}")
    A("v_add_u32 v34, s60, v34")
    A("global_store_dwordx2 v34, v[32:33], s[28:29]")
    A(f"v_add_u32 v34, {SLOW:#x}, v34")
    A("global_store_dwordx2 v34, v[32:33], s[28:29] sc1")
    A("v_lshrrev_b32 v4, 2, v0\nv_and_b32 v4, 7, v4\nv_lshlrev_b32 v4, 9, v4")
    A("v_and_b32 v5, 3, v0\nv_lshl_add_u32 v4, v5, 4, v4")
    A("s_lshl_b32 s60, s31, 5\ns_and_b32 s61, s32, 24\ns_add_u32 s60, s60, s61\ns_lshl_b32 s60, s60, 9")
    A("s_and_b32 s61, s32, 7\ns_lshl_b32 s61, s61, 6\ns_add_u32 s60, s60, s61")
    A(f"s_add_u32 s60, s60, {WS_HP}")
    A("v_add_u32 v4, s60, v4")
    A("s_sleep 24")
    early(6)
    g.poll(lambda: A("global_load_dwordx4 v[64:67], v4, s[28:29] sc1"), [65, 67], sleep=8, addr=[4])
    early(7)
    g.allreduce("add", 64, 68, [2, 3, 4])
    g.allreduce("add", 66, 68, [2, 3, 4])
    A("v_cvt_pk_bf16_f32 v64, v64, v66")
    A("v_lshlrev_b32 v65, 16, v64\nv_and_b32 v66, 0xffff0000, v64")
    A("v_lshlrev_b32 v67, 16, v60\nv_and_b32 v68, 0xffff0000, v60")
    A("v_add_f32 v65, v65, v67\nv_add_f32 v66, v66, v68")
    A("v_cvt_pk_bf16_f32 v64, v65, v66")
    A("v_lshlrev_b32 v65, 16, v64\nv_and_b32 v66, 0xffff0000, v64")
    k1 = 2*math.log2(math.e)*math.sqrt(2/math.pi)
    A(f"s_mov_b32 s60, {f2u(k1):#x}")
    A(f"s_mov_b32 s61, {f2u(0.044715):#x}")
    for r in (65, 66):
        A(f"v_mul_f32 v67, v{r}, v{r}")
        A(f"v_mul_f32 v67, v67, v{r}")
        A(f"v_fma_f32 v67, v67, s61, v{r}")
        A(f"v_mul_f32 v67, s60, v67")
        A("v_exp_f32 v67, v67")
        g.nop(1)
        A("v_add_f32 v67, 1.0, v67")
        A("v_rcp_f32 v67, v67")
        g.nop(1)
        A("v_sub_f32 v67, 1.0, v67")
        A(f"v_mul_f32 v{r}, v{r}, v67")
    A("v_cvt_pk_bf16_f32 v64, v65, v66")
    A("s_branch L_g_wr")
    A("L_g_zero:")
    A("v_mov_b32 v64, 0")
    A("L_g_wr:")
    A("v_and_b32 v4, 3, v0\nv_lshlrev_b32 v4, 2, v4")
    A(f"v_add_u32 v4, {LDS_G}, v4")
    A("ds_write_b32 v4, v64")
    A("s_waitcnt lgkmcnt(0)")
    g.set_lds(F_G, 1)
    early(8)
    A("s_lshl_b32 s64, s31, 5\ns_add_u32 s64, s64, s32")
    A(f"s_mul_i32 s64, s64, {OP_STRIDE}")
    A(f"s_add_u32 s64, s64, {WS_OP}")
    A("s_add_u32 s60, s28, s64\ns_addc_u32 s61, s29, 0")
    if prv in (0, 1, -1): A("s_load_dword s69, s[60:61], 4096")
    if prv == 1:
        g.wait_lds(F_V, prv, sleep=4)
        for i in range(32): A(f"s_load_dword s69, s[60:61], {128*i}")
    elif prv == -1:
        g.wait_lds(F_K, 1, sleep=4)
        for i in range(32): A(f"s_load_dword s69, s[60:61], {128*i}")
    elif prv in (2, 3, 4, 5):
        if prv in (3, 5): g.wait_lds(F_K, 1, sleep=4)
        A("v_lshlrev_b32 v4, 7, v0")
        A("v_add_u32 v4, s64, v4")
        A("s_mov_b32 exec_lo, -1\ns_mov_b32 exec_hi, 1")
        A(f"global_load_dword v8, v4, s[28:29] {'nt' if prv >= 4 else ''}")
        A("s_mov_b64 exec, -1")
        A("s_waitcnt vmcnt(0)")
    A("s_waitcnt lgkmcnt(0)")
    g.flush_stamps()
    A("s_endpgm")

    A("L_common:")
    A("s_cmp_lg_u32 s30, 2")
    A("s_cbranch_scc1 L_nopr")
    A("s_lshl_b32 s64, s31, 5\ns_add_u32 s64, s64, s32")
    A("s_lshl_b32 s60, s31, 14\ns_lshl_b32 s61, s32, 9\ns_add_u32 s60, s60, s61")
    A(f"s_add_u32 s60, s60, {WS_QP}")
    A("s_add_u32 s60, s28, s60\ns_addc_u32 s61, s29, 0")
    for i in range(4): A(f"s_load_dword s69, s[60:61], {128*i}")
    A("s_lshl_b32 s62, s64, 9")
    A(f"s_add_u32 s62, s62, {WS_HP}")
    A("s_add_u32 s62, s28, s62\ns_addc_u32 s63, s29, 0")
    for i in range(4): A(f"s_load_dword s69, s[62:63], {128*i}")
    A("s_waitcnt lgkmcnt(0)")
    A("L_nopr:")
    if prewarm:
        A("s_cmp_eq_u32 s30, 3")
        A("s_cbranch_scc1 L_nopw")
        A("v_mov_b32 v64, 0\nv_mov_b32 v65, 0\nv_mov_b32 v66, 0\nv_mov_b32 v67, 0")
        A("s_lshl_b32 s64, s31, 5\ns_add_u32 s64, s64, s32")
        A(f"s_mul_i32 s64, s64, {OP_STRIDE}")
        A(f"s_add_u32 s64, s64, {WS_OP}")
        A(f"s_mul_i32 s60, s2, {PP_STRIDE}")
        A(f"s_add_u32 s60, s60, {WS_PP}")
        A("s_cmp_eq_u32 s30, 1")
        A("s_cselect_b32 s60, s64, s60")
        A("v_lshlrev_b32 v4, 4, v0")
        A("v_add_u32 v4, s60, v4")
        pf = "sc1" if prewarm == 1 else ""
        for i in range(3):
            A(f"global_store_dwordx4 v4, v[64:67], s[28:29] offset:{1024*i} {pf}")
        A("s_cmp_eq_u32 s30, 1")
        A("s_cselect_b32 exec_hi, -1, 0")
        A(f"global_store_dwordx4 v4, v[64:67], s[28:29] offset:3072 {pf}")
        A("s_mov_b64 exec, -1")
        A("L_nopw:")
    A("s_waitcnt vmcnt(0)")
    A("v_readfirstlane_b32 s33, v63")
    A(f"s_add_u32 s33, s33, {PHI}")
    A("L_common2:")
    A("v_and_b32 v6, 15, v0")
    A("v_lshrrev_b32 v5, 4, v0")
    A("v_xor_b32 v7, v5, v6")
    A("s_lshl_b32 s60, s30, 14")
    for m in range(4):
        A(f"v_xor_b32 v{8+m}, {4*m}, v7")
        A(f"v_lshlrev_b32 v{8+m}, 4, v{8+m}")
        A(f"v_lshl_add_u32 v{8+m}, v6, 9, v{8+m}")
        A(f"v_add_u32 v{8+m}, s60, v{8+m}")
    A("v_and_b32 v4, 1, v0\nv_lshlrev_b32 v4, 9, v4")
    A("v_lshl_add_u32 v4, v5, 4, v4")
    A(f"v_add_u32 v27, {LDS_Q}, v4")
    A("v_and_b32 v4, 1, v0\nv_lshl_add_u32 v4, v5, 1, v4\nv_lshlrev_b32 v4, 4, v4")
    A(f"v_add_u32 v4, {LDS_PX}, v4")
    A("s_lshl_b32 s60, s30, 7")
    A("v_add_u32 v30, s60, v4")
    A(f"v_mov_b32 v7, {LDS_ZX}")
    for t in range(4):
        A(f"s_mov_b32 s66, {0x00030003 << (2*t):#x}\ns_mov_b32 s67, s66")
        A(f"v_cndmask_b32 v{20+t}, v7, v4, s[66:67]")
    A("v_and_b32 v31, 1, v0\nv_lshlrev_b32 v31, 3, v31")
    A(f"v_add_u32 v31, {LDS_SX}, v31")
    A("v_lshrrev_b32 v4, 2, v0")
    A("v_and_b32 v7, 7, v4")
    A("v_and_b32 v12, 3, v0\nv_lshlrev_b32 v12, 3, v12")
    A("v_lshl_add_u32 v12, v4, 9, v12")
    A(f"v_add_u32 v12, {LDS_V}, v12")
    A("s_lshl_b32 s60, s30, 2")
    for t in range(4):
        A(f"s_add_u32 s61, s60, {t}")
        A(f"v_xor_b32 v{16+t}, s61, v7")
        A(f"v_lshl_add_u32 v{16+t}, v{16+t}, 5, v12")
    A("s_lshl_b32 s64, s31, 5\ns_add_u32 s64, s64, s32")
    A(f"s_mul_i32 s64, s64, {OP_STRIDE}")
    A(f"s_add_u32 s64, s64, {WS_OP}")
    A("v_and_b32 v4, 1, v0\nv_lshlrev_b32 v4, 4, v4")
    A("v_bfe_u32 v7, v0, 1, 3")
    A("v_add3_u32 v4, v4, v7, s60")
    A("v_lshlrev_b32 v4, 7, v4")
    A("v_lshl_add_u32 v4, v5, 4, v4")
    A("v_add_u32 v12, s64, v4")
    for r in (241, 243, 245, 247):
        A(f"v_mov_b32 v{r}, s33")
    A(f"s_movk_i32 s60, {OP_STRIDE}")
    A("v_lshrrev_b32 v4, 3, v0")
    A("v_mul_lo_u32 v4, v4, s60")
    A(f"s_mul_i32 s61, s31, {32*OP_STRIDE}")
    A(f"s_add_u32 s61, s61, {WS_OP}")
    A("v_and_b32 v7, 7, v0\nv_lshlrev_b32 v7, 4, v7")
    A("s_lshl_b32 s66, s32, 7")
    A("s_add_u32 s66, s66, s61")
    A("v_add3_u32 v13, v4, v7, s66")
    for i in range(1, 4):
        A(f"v_add_u32 v{251+i}, {8*OP_STRIDE*i}, v13")
    A("v_and_b32 v4, 31, v0")
    A("v_mul_lo_u32 v4, v4, s60")
    A("s_lshr_b32 s60, s32, 4\ns_lshl_b32 s60, s60, 4\ns_add_u32 s60, s60, 4096\ns_add_u32 s60, s60, s61")
    A("v_add_u32 v24, s60, v4")
    A("v_lshrrev_b32 v255, 3, v0\nv_lshlrev_b32 v255, 2, v255")
    A("v_lshrrev_b32 v4, 5, v0")
    A("s_lshl_b32 s60, s30, 1")
    A("v_add_u32 v4, s60, v4")
    A("v_and_b32 v7, 31, v0")
    A("v_lshlrev_b32 v25, 11, v4")
    A("v_lshl_add_u32 v25, v7, 4, v25")
    A("s_lshl_b32 s60, s31, 14")
    A(f"s_add_u32 s60, s60, {WS_QP}")
    A("v_add_u32 v25, s60, v25")
    A("v_lshlrev_b32 v26, 7, v4")
    A("v_lshl_add_u32 v26, v7, 2, v26")
    A(f"v_add_u32 v26, {LDS_Q}, v26")
    A("s_mul_i32 s60, s30, 56")
    A("v_add_u32 v4, s60, v0")
    A("v_lshlrev_b32 v29, 4, v4")
    A(f"s_mul_i32 s60, s2, {PP_STRIDE}")
    A(f"s_add_u32 s60, s60, {WS_PP}")
    A("v_add_u32 v29, s60, v29")
    A("v_lshlrev_b32 v4, 2, v4")
    A(f"v_add_u32 v28, {LDS_W}, v4")
    cexp = math.log2(math.e)/16.0
    A(f"s_mov_b32 s65, {f2u(cexp):#x}")
    A("s_cmp_lg_u32 s30, 0")
    A("s_cbranch_scc1 L_wait_pub")
    if dlA: A(f"s_sleep {dlA}")
    g.set_lds(F_PUB, 1)
    early(6)
    A("s_branch L_qgather")
    A("L_wait_pub:")
    g.wait_lds(F_PUB, 1, sleep=4)
    A("L_qgather:")
    def qloads():
        for rc in range(4):
            A(f"global_load_dwordx4 v[{64+4*rc}:{67+4*rc}], v25, s[28:29] offset:{512*rc} sc1")
    def qslow():
        Lq = g.label("qs")
        A("s_cmp_lg_u32 s30, 0")
        A(f"s_cbranch_scc1 {Lq}")
        A("global_store_dwordx2 v102, v[100:101], s[28:29] sc1")
        A(f"{Lq}:")
    A("s_mov_b32 s68, 0")
    qloads()
    A("s_cmp_lg_u32 s30, 0")
    A("s_cbranch_scc1 L_q_w0")
    A("global_store_dwordx2 v102, v[100:101], s[28:29] sc1")
    A("s_waitcnt vmcnt(1)")
    A("s_branch L_q_chk")
    A("L_q_w0:")
    A("s_waitcnt vmcnt(0)")
    A("L_q_chk:")
    g.poll(qloads, [65, 67, 69, 71, 73, 75, 77, 79], sleep=slA, addr=[25], first_issued=True, nafter=1)
    A("v_add_f32 v64, v64, v68\nv_add_f32 v66, v66, v70")
    A("v_add_f32 v64, v64, v72\nv_add_f32 v66, v66, v74")
    A("v_add_f32 v64, v64, v76\nv_add_f32 v66, v66, v78")
    A("v_cvt_pk_bf16_f32 v64, v64, v66")
    A("ds_write_b32 v26, v64")
    A("s_waitcnt lgkmcnt(0)")
    A("s_mov_b64 exec, 1")
    A("v_mov_b32 v14, 1")
    A(f"ds_add_u32 v15, v14 offset:{F_Q}")
    A("s_mov_b64 exec, -1")
    early(7)
    if cut == 2: A("s_endpgm")
    g.wait_lds(F_K, 1, sleep=3)
    for T in range(2):
        for s in range(8):
            b = 64 + 32*T + 4*s
            A(f"ds_read_b128 v[{b}:{b+3}], v{8+(s&3)} offset:{(s>>2)*256 + T*8192 + LDS_K}")
    g.wait_lds(F_Q, 4, sleep=1)

    early(8)
    for s in range(8):
        A(f"ds_read_b128 v[{32+4*s}:{35+4*s}], v27 offset:{64*s}")
    for s in range(8):
        A(f"s_waitcnt lgkmcnt({7-s})")
        for T in range(2):
            b = 64 + 32*T + 4*s
            D = 128 + 4*T
            C = "0" if s == 0 else f"v[{D}:{D+3}]"
            A(f"v_mfma_f32_16x16x32_bf16 v[{D}:{D+3}], v[{b}:{b+3}], v[{32+4*s}:{35+4*s}], {C}")
    g.nop(8)
    for k in range(4):
        a, b = 128+2*k, 129+2*k
        A(f"v_cvt_pk_bf16_f32 v4, v{a}, v{b}")
        A(f"v_lshlrev_b32 v{a}, 16, v4")
        A(f"v_and_b32 v{b}, 0xffff0000, v4")
    A("v_max3_f32 v4, v128, v129, v130")
    A("v_max3_f32 v4, v4, v131, v132")
    A("v_max3_f32 v4, v4, v133, v134")
    A("v_max_f32 v4, v4, v135")
    g.allreduce("max", 4, 5, [4, 5])
    A("v_mul_f32 v6, s65, v4")
    for k in range(8):
        A(f"v_fma_f32 v{128+k}, v{128+k}, s65, -v6")
    for k in range(8):
        A(f"v_exp_f32 v{128+k}, v{128+k}")
    g.nop(1)
    A("v_add_f32 v5, v128, v129\nv_add_f32 v6, v130, v131\nv_add_f32 v7, v132, v133\nv_add_f32 v140, v134, v135")
    A("v_add_f32 v5, v5, v6\nv_add_f32 v7, v7, v140")
    for q in range(4):
        A(f"v_cvt_pk_bf16_f32 v{136+q}, v{128+2*q}, v{129+2*q}")
    A("v_add_f32 v5, v5, v7")
    g.allreduce("add", 5, 6, [4, 5])
    A("s_mov_b32 exec_lo, 0x00030003\ns_mov_b32 exec_hi, 0x00030003")
    A("ds_write_b128 v30, v[136:139]")
    A("s_mov_b64 exec, 3")
    A("s_lshl_b32 s60, s30, 4")
    A("v_add_u32 v6, s60, v31")
    A("ds_write_b64 v6, v[4:5]")
    A("s_waitcnt lgkmcnt(0)")
    A("s_mov_b64 exec, 1")
    A("v_mov_b32 v14, 1")
    A(f"ds_add_u32 v15, v14 offset:{F_P}")
    A("s_mov_b64 exec, -1")
    early(9)
    g.wait_lds(F_P, 4, sleep=1)
    for s in range(4):
        A(f"ds_read_b64 v[{140+2*s}:{141+2*s}], v31 offset:{16*s}")
    for s in range(4):
        for t in range(4):
            b = 160+16*s+4*t
            A(f"ds_read_b128 v[{b}:{b+3}], v{20+t} offset:{128*s}")
    A("s_waitcnt lgkmcnt(0)")
    A("v_max3_f32 v4, v140, v142, v144")
    A("v_max_f32 v4, v4, v146")
    for s in range(4):
        A(f"v_sub_f32 v{148+s}, v{140+2*s}, v4")
        A(f"v_mul_f32 v{148+s}, s65, v{148+s}")
    for s in range(4):
        A(f"v_exp_f32 v{148+s}, v{148+s}")
    g.nop(1)
    A("v_mul_f32 v6, v148, v141")
    for s in range(1, 4):
        A(f"v_fmac_f32 v6, v{148+s}, v{141+2*s}")
    A("s_cmp_lg_u32 s30, 0")
    Ls = g.label("nostat")
    A(f"s_cbranch_scc1 {Ls}")
    A("v_mov_b32 v5, s33\nv_mov_b32 v7, s33")
    A("v_lshlrev_b32 v152, 4, v0")
    A("s_add_u32 s60, s64, 4096")
    A("v_add_u32 v152, s60, v152")
    A("s_mov_b64 exec, 15")
    A("global_store_dwordx4 v152, v[4:7], s[28:29]")
    A(f"v_add_u32 v152, {SLOW:#x}, v152")
    A("global_store_dwordx4 v152, v[4:7], s[28:29] sc1")
    A("s_mov_b64 exec, -1")
    A(f"{Ls}:")
    early(10)
    g.wait_lds(F_G, 1, sleep=3)
    A(f"v_mov_b32 v4, {LDS_G}")
    A("ds_read_b128 v[4:7], v4")
    A("s_waitcnt lgkmcnt(0)")
    for k in range(4):
        A(f"v_readfirstlane_b32 s{40+k}, v{4+k}")
    if cut == 3: A("s_endpgm")
    for s in range(4):
        if s == 3:
            g.nop(8)
            for i in range(4):
                A(f"v_mul_f32 v{152+i}, v148, v{224+i}")
                A(f"v_fmac_f32 v{152+i}, v149, v{228+i}")
                A(f"v_fmac_f32 v{152+i}, v150, v{232+i}")
            if (cut != 4 or xstat) and not nostat:
                if xstat == 2: A("v_add_u32 v24, 0x2000000, v24")
                if xstat == 3: A(f"v_subrev_u32 v24, {WS_OP - 0x10000}, v24\nv_and_b32 v24, 0x1fff0, v24\nv_add_u32 v24, 0x10000, v24")
                if xstat == 4: A("v_and_b32 v24, 31, v0\nv_lshlrev_b32 v24, 4, v24\nv_add_u32 v24, 0x2000000, v24")
                A("global_load_dwordx4 v[80:83], v24, s[28:29] sc1")
        if s < 3: g.wait_lds(F_V, s+1, sleep=3)
        else: A("s_barrier")
        if s == 3: g.stamp(11)
        for t in range(4):
            A(f"ds_read_b64_tr_b16 v[{64+4*t}:{65+4*t}], v{16+t} offset:{s*16384}")
            A(f"ds_read_b64_tr_b16 v[{66+4*t}:{67+4*t}], v{16+t} offset:{s*16384+8192}")
        D = 224 + 4*s
        for t in range(4):
            A(f"s_waitcnt lgkmcnt({6-2*t})")
            C = "0" if t == 0 else f"v[{D}:{D+3}]"
            b = 160+16*s+4*t
            A(f"v_mfma_f32_16x16x32_bf16 v[{D}:{D+3}], v[{64+4*t}:{67+4*t}], v[{b}:{b+3}], {C}")
    if cut == 4: A("s_endpgm")
    A("s_mov_b32 exec_lo, 0x00ff00ff\ns_mov_b32 exec_hi, 0x00ff00ff")
    g.nop(6)
    for i in range(4):
        A(f"v_fma_f32 v{240+2*i}, v151, v{236+i}, v{152+i}")
    A("global_store_dwordx4 v12, v[240:243], s[28:29]")
    A("global_store_dwordx4 v12, v[244:247], s[28:29] offset:64")
    A(f"v_add_u32 v12, {SLOW:#x}, v12")
    A("s_mov_b64 exec, -1")
    late(4)
    if cut == 5: A("s_endpgm")
    LC = g.label("st")
    A("s_waitcnt vmcnt(2)")
    A("v_cmp_ne_u32 vcc, s33, v81")
    A("s_mov_b64 s[62:63], vcc")
    A("v_cmp_ne_u32 vcc, s33, v83")
    A("s_or_b64 s[62:63], s[62:63], vcc")
    A("s_and_b64 exec, s[62:63], s[62:63]")
    A(f"s_cbranch_scc0 {LC}")
    g.poll(lambda: A("global_load_dwordx4 v[80:83], v24, s[28:29] sc1"), [81, 83], sleep=slC, addr=[24])
    A(f"{LC}:")
    A("s_mov_b64 exec, -1")
    late(5)
    A("v_mov_b32 v84, v80")
    g.allreduce("max", 84, 85, [0, 1, 2, 3, 4])
    A("v_sub_f32 v84, v80, v84")
    A("v_mul_f32 v84, s65, v84")
    A("v_exp_f32 v84, v84")
    g.nop(1)
    A("v_mul_f32 v85, v84, v82")
    g.allreduce("add", 85, 86, [0, 1, 2, 3, 4])
    A("v_rcp_f32 v85, v85")
    g.nop(1)
    A("v_mul_f32 v84, v84, v85")
    for i in range(4):
        A(f"v_add_u32 v85, {32*i}, v255")
        A(f"ds_bpermute_b32 v{88+i}, v85, v84")
    def cloads():
        A("global_load_dwordx4 v[64:67], v13, s[28:29] sc1")
        for i in range(1, 4):
            A(f"global_load_dwordx4 v[{64+4*i}:{67+4*i}], v{251+i}, s[28:29] sc1")
    late(6)
    cloads()
    A("s_mov_b32 exec_lo, 0x00ff00ff\ns_mov_b32 exec_hi, 0x00ff00ff")
    A("global_store_dwordx4 v12, v[240:243], s[28:29] sc1")
    A("global_store_dwordx4 v12, v[244:247], s[28:29] offset:64 sc1")
    A("s_mov_b64 exec, -1")
    A("s_waitcnt lgkmcnt(0)")
    A("s_barrier")
    g.stamp(12)
    def wprep():
        for r in range(24):
            A(f"ds_read_b32 v{96+r}, v28 offset:{896*r}")
        A("s_mov_b32 s60, 0x05040100\ns_mov_b32 s61, 0x07060302")
        A("v_mov_b32 v232, 0\nv_mov_b32 v234, 0\nv_mov_b32 v236, 0\nv_mov_b32 v238, 0\nv_mov_b32 v233, s33\nv_mov_b32 v235, s33")
        A("s_waitcnt lgkmcnt(0)")
        for k in range(12):
            A(f"v_perm_b32 v{128+k}, v{97+2*k}, v{96+2*k}, s60")
            A(f"v_perm_b32 v{144+k}, v{97+2*k}, v{96+2*k}, s61")
        for k in range(4):
            A(f"v_dot2_f32_bf16 v{232+4*(k&1)}, v{136+k}, s{40+k}, v{232+4*(k&1)}")
            A(f"v_dot2_f32_bf16 v{234+4*(k&1)}, v{152+k}, s{40+k}, v{234+4*(k&1)}")
        late(7)
    g.poll(cloads, [65, 67, 69, 71, 73, 75, 77, 79], sleep=slC, first_issued=True, between=wprep, nafter=2, addr=[13, 252, 253, 254], diag=(10 if tail else None), cnt=(5 if tail else None))
    if cut == 6: A("s_endpgm")
    g.stamp(13)
    A("v_mul_f32 v92, v88, v64\nv_mul_f32 v93, v88, v66")
    for i in range(1, 4):
        A(f"v_fmac_f32 v92, v{88+i}, v{64+4*i}")
        A(f"v_fmac_f32 v93, v{88+i}, v{66+4*i}")
    g.nop(1)
    A("v_permlane32_swap_b32 v92, v93")
    g.nop(1)
    A("v_add_f32 v92, v92, v93")
    g.allreduce("add", 92, 93, [3, 4])
    A("v_mov_b32 v93, v92")
    g.nop(2)
    A("v_permlane32_swap_b32 v92, v93")
    g.nop(1)
    A("v_cvt_pk_bf16_f32 v88, v92, v93")
    g.nop(1)
    for k in range(8):
        A(f"v_readlane_b32 s{4+k}, v88, {(k&1)*4 + (k>>1)}")
    g.nop(1)
    for k in range(8):
        A(f"v_dot2_f32_bf16 v{232+4*(k&1)}, v{128+k}, s{4+k}, v{232+4*(k&1)}")
        A(f"v_dot2_f32_bf16 v{234+4*(k&1)}, v{144+k}, s{4+k}, v{234+4*(k&1)}")
    A("s_mov_b32 exec_lo, -1\ns_mov_b32 exec_hi, 0x00ffffff")
    g.nop(2)
    A("v_add_f32 v232, v232, v236\nv_add_f32 v234, v234, v238")
    A(f"global_store_dwordx4 v29, v[232:235], s[28:29] {stf}")
    late(8)
    A("s_mov_b64 exec, -1")
    A("s_cmp_ge_u32 s51, 28")
    A("s_cbranch_scc1 L_fin")
    A("s_cmp_ge_u32 s32, 8")
    A("s_cbranch_scc1 L_fin")
    A(f"s_movk_i32 s60, {PP_STRIDE}")
    A("v_lshrrev_b32 v4, 2, v0")
    A("v_mul_lo_u32 v4, v4, s60")
    A("v_and_b32 v5, 3, v0")
    A("v_lshl_add_u32 v4, v5, 4, v4")
    A("s_lshl_b32 s60, s51, 7\ns_lshl_b32 s61, s52, 6\ns_add_u32 s60, s60, s61")
    A(f"s_mul_i32 s61, s30, {64*PP_STRIDE}")
    A("s_add_u32 s60, s60, s61")
    A(f"s_add_u32 s60, s60, {WS_PP}")
    A("v_add_u32 v16, s60, v4")
    for i in range(1, 4):
        A(f"v_add_u32 v{16+i}, {i*16*PP_STRIDE}, v16")
    A("s_waitcnt vmcnt(0)")
    g.stamp(9)
    def dloads():
        for i in range(4):
            A(f"global_load_dwordx4 v[{64+4*i}:{67+4*i}], v{16+i}, s[28:29] sc1")
    g.poll(dloads, sum([[65+4*i, 67+4*i] for i in range(4)], []), sleep=slD)
    g.stamp(2)
    A("v_add_f32 v64, v64, v68\nv_add_f32 v72, v72, v76\nv_add_f32 v66, v66, v70\nv_add_f32 v74, v74, v78")
    A("v_add_f32 v64, v64, v72\nv_add_f32 v66, v66, v74")
    g.nop(1)
    A("v_permlane32_swap_b32 v64, v66")
    g.nop(1)
    A("v_add_f32 v64, v64, v66")
    g.allreduce("add", 64, 68, [2, 3, 4])
    A("v_lshrrev_b32 v4, 5, v0\nv_lshlrev_b32 v4, 2, v4\nv_and_b32 v5, 3, v0\nv_add_u32 v4, v4, v5")
    A("v_lshlrev_b32 v4, 2, v4")
    A(f"v_add_u32 v4, {LDS_PX}, v4")
    A("s_lshl_b32 s60, s30, 5")
    A("v_add_u32 v5, s60, v4")
    A("ds_write_b32 v5, v64")
    A("s_waitcnt lgkmcnt(0)")
    A("s_barrier")
    A("s_cmp_lg_u32 s30, 0")
    A("s_cbranch_scc1 L_fin")
    for u in range(4):
        A(f"ds_read_b32 v{64+u}, v4 offset:{32*u}")
    A("s_waitcnt lgkmcnt(0)")
    A("v_add_f32 v64, v64, v65\nv_add_f32 v66, v66, v67")
    A("v_add_f32 v64, v64, v66")
    A("v_mov_b32 v66, v64")
    g.nop(2)
    A("v_permlane32_swap_b32 v64, v66")
    g.nop(1)
    A("v_lshlrev_b32 v68, 16, v248\nv_and_b32 v69, 0xffff0000, v248")
    A("v_add_f32 v64, v64, v68\nv_add_f32 v66, v66, v69")
    A("v_lshlrev_b32 v68, 16, v249\nv_and_b32 v69, 0xffff0000, v249")
    A("v_add_f32 v64, v64, v68\nv_add_f32 v66, v66, v69")
    A("v_cvt_pk_bf16_f32 v64, v64, v66")
    A("v_and_b32 v4, 3, v0")
    A("v_lshl_add_u32 v4, v4, 2, s53")
    A("s_mov_b64 exec, 15")
    A("global_store_dword v4, v64, s[24:25]")
    A("s_mov_b64 exec, 1")
    A("s_cmp_lg_u32 s2, 0")
    A("s_cbranch_scc1 L_fin")
    A("v_mov_b32 v4, 0\nv_mov_b32 v5, s33")
    A("global_store_dword v4, v5, s[28:29] sc1")
    A("L_fin:")
    g.stamp(3)
    g.flush_stamps()
    A("s_endpgm")

    A("L_loader:")
    A("v_mov_b32 v4, 0\nv_mov_b32 v5, 0\nv_mov_b32 v6, 0\nv_mov_b32 v7, 0")
    A("ds_write_b128 v15, v[4:7]")
    A("ds_write_b128 v15, v[4:7] offset:16")
    A("v_lshlrev_b32 v8, 3, v0")
    A(f"v_add_u32 v8, {LDS_ZX}, v8")
    A("ds_write_b64 v8, v[4:5]")
    A("v_lshrrev_b32 v1, 5, v0")
    A("v_and_b32 v2, 31, v0")
    A("v_xor_b32 v3, v2, v1")
    A("v_lshlrev_b32 v3, 4, v3")
    A("v_lshl_add_u32 v3, v1, 9, v3")
    for b in range(8):
        A(f"v_xor_b32 v{16+b}, {(2*b) << 4}, v3")
    A("v_lshlrev_b32 v3, 1, v1")
    A("v_xor_b32 v3, v2, v3")
    A("v_lshlrev_b32 v3, 4, v3")
    A("v_lshl_add_u32 v3, v1, 9, v3")
    for b in range(4):
        A(f"v_xor_b32 v{24+b}, {((2*b) & 7) << 5}, v3")
    A("v_lshlrev_b32 v28, 4, v0")
    A("s_lshl_b32 s44, s31, 25\ns_add_u32 s44, s44, 0x1e00000\ns_lshl_b32 s45, s32, 16\ns_add_u32 s44, s44, s45")
    A("s_lshl_b32 s45, s31, 5\ns_add_u32 s45, s45, s32")
    A(f"s_mul_i32 s45, s45, {16*896}")
    A("s_lshl_b32 s46, s31, 5\ns_add_u32 s46, s46, s32\ns_min_u32 s46, s46, 223")
    A(f"s_mul_i32 s46, s46, {8*896}")
    A("s_waitcnt lgkmcnt(0)")
    def srd(d, lo, hi, off, n):
        A(f"s_add_u32 s{d}, s{lo}, s{off}\ns_addc_u32 s{d+1}, s{hi}, 0\ns_and_b32 s{d+1}, s{d+1}, 0xffff")
        A(f"s_mov_b32 s{d+2}, {n}\ns_mov_b32 s{d+3}, 0x20000")
    srd(36, 6, 7, 44, 65536)
    srd(40, 8, 9, 44, 65536)
    srd(48, 12, 13, 45, 16*896)
    srd(52, 20, 21, 46, 8*896)
    A("s_barrier")
    g.stamp(1)
    groups = []
    for k in range(16):
        groups.append([(36, 16 + (4*k + i) % 8, LDS_K + 4096*k, 4096*k, 1024*i) for i in range(4)])
    for k in range(16):
        groups.append([(40, 24 + i, LDS_V + 4096*k, 4096*k, 1024*i) for i in range(4)])
    for k in range(4):
        n = 4 if k < 3 else 2
        groups.append([(48, 28, LDS_W + 4096*k, 4096*k, 1024*i) for i in range(n)])
    for k in range(2):
        n = 4 if k < 1 else 3
        groups.append([(52, 28, LDS_W + 14336 + 4096*k, 4096*k, 1024*i) for i in range(n)])
    total = sum(len(x) for x in groups)
    events = [(64, F_K, 1, 2), (80, F_V, 1, None), (96, F_V, 2, None), (112, F_V, 3, None), (128, 'bar', 0, 3), (total, 'bar', 0, 4)]
    issued = 0
    ev = 0
    for gi, grp in enumerate(groups):
        A(f"s_mov_b32 m0, {grp[0][2]}")
        A(f"s_mov_b32 s56, {grp[0][3]}")
        for (sr, va, lb, so, io) in grp:
            A(f"buffer_load_dwordx4 v{va}, s[{sr}:{sr+3}], s56 offen offset:{io} {nt} lds")
            issued += 1
        win = window(gi) if callable(window) else window
        if issued > win and gi < len(groups) - 1:
            A(f"s_waitcnt vmcnt({win})")
            done = issued - win
            while ev < len(events) and events[ev][0] <= done:
                assert events[ev][1] != 'bar'
                g.set_lds(events[ev][1], events[ev][2])
                if events[ev][3] is not None: g.stamp(events[ev][3])
                ev += 1
    early(5)
    while ev < len(events):
        A(f"s_waitcnt vmcnt({total - events[ev][0]})")
        if events[ev][3] is not None: g.stamp(events[ev][3])
        if events[ev][1] == 'bar': A("s_barrier")
        else: g.set_lds(events[ev][1], events[ev][2])
        ev += 1
    A("s_waitcnt lgkmcnt(0)")
    g.flush_stamps()
    A("L_end:")
    A("s_endpgm")
    A('.section .rodata,"a"')
    A(".p2align 6")
    A(f".amdhsa_kernel {KN}")
    A("  .amdhsa_next_free_vgpr 256")
    A("  .amdhsa_next_free_sgpr 102")
    A("  .amdhsa_accum_offset 256")
    A("  .amdhsa_group_segment_fixed_size 0")
    A("  .amdhsa_kernarg_size 104")
    A("  .amdhsa_user_sgpr_count 2")
    A("  .amdhsa_user_sgpr_kernarg_segment_ptr 1")
    A("  .amdhsa_system_sgpr_workgroup_id_x 1")
    A(".end_amdhsa_kernel")
    return "\n".join(g.L) + "\n"

if __name__ == "__main__":
    import argparse
    ap = argparse.ArgumentParser()
    ap.add_argument("-o", default="cdna_kernels/" + NAME + ".s")
    ap.add_argument("--stamps", action="store_true")
    ap.add_argument("--window", type=int, default=24)
    ap.add_argument("--nt", default="nt")
    ap.add_argument("--nopf", action="store_true")
    ap.add_argument("--cut", type=int, default=0)
    ap.add_argument("--prv", type=int, default=1)
    ap.add_argument("--tail", action="store_true")
    ap.add_argument("--dlA", type=int, default=6)
    ap.add_argument("--xstat", type=int, default=0)
    ap.add_argument("--nostat", action="store_true")
    ap.add_argument("--stf", default="sc1")
    ap.add_argument("--prewarm", type=int, default=0)
    ap.add_argument("--noinit", action="store_true")
    ap.add_argument("--slC", type=int, default=4)
    ap.add_argument("--slD", type=int, default=4)
    a = ap.parse_args()
    open(a.o, "w").write(build(a.prv, a.tail, a.dlA, a.xstat, a.nostat, a.stf, a.prewarm, a.cut, a.noinit, a.stamps, a.window, a.nt, prefetch=not a.nopf, slC=a.slC, slD=a.slD))
    print("wrote", a.o)
```

```python
import sys, math, struct

NAME = "parallel_sum__sliding_block_cached__dense_activation_gelu__decode"
KN = NAME + "_kernel"
f2u = lambda x: struct.unpack("<I", struct.pack("<f", x))[0]
PHI = 0x9E3779B9
TO_BIT = 22
NW = 6

LDS_K = 0
LDS_V = 65536
LDS_W = 131072
LDS_XN = 155648
LDS_Q = 156672
LDS_PX = 157696
LDS_ZX = 158208
LDS_SX = 158720
LDS_G = 158784
LDS_O8 = 158800
LDS_FL = 158848
LDS_SIZE = 158912
F_K, F_V, F_W, F_Q, F_PUB, F_G, F_P, F_O, F_OS, F_ST = 0, 4, 8, 12, 16, 20, 24, 28, 32, 36

WS_QP = 0x10000
WS_HP = 0x40000
WS_ST = 0x70000
WS_OP = 0x100000
OP_STRIDE = 4096
WS_PP = 0x300000
PP_STRIDE = 3584
WS_STAMP = 0x800000
SLOW = 0x1000000
FB_AFTER = 12

class Gen:
    def __init__(self, stamps):
        self.L = []; self.stamps = stamps; self.lab = 0
    def __call__(self, s):
        for x in s.split("\n"): self.L.append(x)
    def label(self, base):
        self.lab += 1
        return f"L_{base}_{self.lab}"
    def nop(self, n):
        while n > 0:
            k = min(n, 16); self(f"s_nop {k-1}"); n -= k
    def stamp(self, idx):
        if self.stamps: self(f"s_memrealtime s[{70+2*idx}:{71+2*idx}]")
    def flush_stamps(self, n=14):
        if not self.stamps: return
        self("s_waitcnt lgkmcnt(0)")
        self("s_mov_b64 exec, 1")
        self(f"s_mul_i32 s60, s2, {NW}")
        self("s_add_u32 s60, s60, s30")
        self("s_lshl_b32 s60, s60, 7")
        self(f"s_add_u32 s60, s60, {WS_STAMP}")
        self("v_mov_b32 v1, s60")
        for i in range(n):
            self(f"v_mov_b32 v2, s{70+2*i}")
            self(f"global_store_dword v1, v2, s[28:29] offset:{4*i}")
            self("s_nop 1")
        self("s_mov_b64 exec, -1")
    def timeout(self, loop):
        self("s_add_u32 s59, s59, 1")
        self(f"s_bitcmp1_b32 s59, {TO_BIT}")
        self(f"s_cbranch_scc0 {loop}")
        self("s_branch L_end")
    def wait_lds(self, off, val, sleep=2):
        L = self.label("wl"); D = self.label("wld")
        self(f"{L}:")
        self(f"ds_read_b32 v14, v15 offset:{off}")
        self("s_waitcnt lgkmcnt(0)")
        self("v_readfirstlane_b32 s58, v14")
        self(f"s_cmp_ge_u32 s58, {val}")
        self(f"s_cbranch_scc1 {D}")
        if sleep: self(f"s_sleep {sleep}")
        self.timeout(L)
        self(f"{D}:")
    def set_lds(self, off, val):
        self(f"v_mov_b32 v14, {val}")
        self(f"ds_write_b32 v15, v14 offset:{off}")
    def add_lds(self, off):
        self("s_mov_b64 exec, 1")
        self("v_mov_b32 v14, 1")
        self(f"ds_add_u32 v15, v14 offset:{off}")
        self("s_mov_b64 exec, -1")
    def xswap(self, which, op, v, t):
        self(f"v_mov_b32 v{t}, v{v}")
        self.nop(2)
        self(f"v_permlane{which}_swap_b32 v{v}, v{t}")
        self.nop(1)
        self(f"v_{op}_f32 v{v}, v{v}, v{t}")
    def allreduce(self, op, v, t, bits):
        assert (2 in bits) <= (3 in bits)
        for b in bits:
            if b in (0, 1, 2, 3):
                sel = {0: "quad_perm:[1,0,3,2]", 1: "quad_perm:[2,3,0,1]", 2: "row_ror:4", 3: "row_ror:8"}[b]
                self.nop(2)
                self(f"v_{op}_f32_dpp v{v}, v{v}, v{v} {sel} row_mask:0xf bank_mask:0xf")
            elif b == 4: self.xswap(16, op, v, t)
            elif b == 5: self.xswap(32, op, v, t)
    def bf16r(self, dst, src):
        self(f"v_cvt_pk_bf16_f32 v{dst}, v{src}, v{src}")
        self(f"v_lshlrev_b32 v{dst}, 16, v{dst}")
    def scatter8(self, a, tmp):
        g = self
        g.nop(2)
        for j in range(4): g(f"v_permlane32_swap_b32 v{a+j}, v{a+4+j}")
        g.nop(1)
        for j in range(4): g(f"v_add_f32 v{a+j}, v{a+j}, v{a+4+j}")
        g.nop(2)
        for j in range(2): g(f"v_permlane16_swap_b32 v{a+j}, v{a+2+j}")
        g.nop(1)
        for j in range(2): g(f"v_add_f32 v{a+j}, v{a+j}, v{a+2+j}")
        g(f"v_and_b32 v{tmp}, 8, v0")
        g(f"v_cmp_ne_u32 vcc, 0, v{tmp}")
        g(f"v_add_f32_dpp v{a}, v{a}, v{a} row_ror:8 row_mask:0xf bank_mask:0xf")
        g(f"v_add_f32_dpp v{a+1}, v{a+1}, v{a+1} row_ror:8 row_mask:0xf bank_mask:0xf")
        g.nop(1)
        g(f"v_cndmask_b32 v{a}, v{a}, v{a+1}, vcc")
    def poll(self, loads, tagregs, sleep, addr=None, first=None, nafter=0):
        g = self
        L = g.label("pl"); C = g.label("pc"); D = g.label("pd"); N = g.label("pn")
        if addr: g("s_mov_b32 s68, 0")
        if first:
            first()
            g(f"s_waitcnt vmcnt({nafter})")
            g(f"s_branch {C}")
        g(f"{L}:")
        loads()
        g("s_waitcnt vmcnt(0)")
        g(f"{C}:")
        fst = True
        for r in tagregs:
            g(f"v_cmp_ne_u32 vcc, s33, v{r}")
            g("s_mov_b64 s[62:63], vcc" if fst else "s_or_b64 s[62:63], s[62:63], vcc")
            fst = False
        g("s_and_b64 exec, s[62:63], s[62:63]")
        g(f"s_cbranch_scc0 {D}")
        if sleep: g(f"s_sleep {sleep}")
        if addr:
            g("s_add_u32 s68, s68, 1")
            g(f"s_cmp_lt_u32 s68, {FB_AFTER}")
            g(f"s_cbranch_scc1 {N}")
            for a in addr: g(f"v_xor_b32 v{a}, {SLOW:#x}, v{a}")
            g(f"{N}:")
        g.timeout(L)
        g(f"{D}:")
        g("s_mov_b64 exec, -1")

def build(stamps=False, window=24, nt="nt", cut=0, dlA=16, slA=8, slS=4, slC=1, slD=1, prefetch=True, tail=False, slF=1, dlS=6):
    A = g = Gen(stamps)
    def early(i):
        if not tail: g.stamp(i)
    def late(i):
        if tail: g.stamp(i)
    A(f"; @launch grid=(256,1,1) block=({NW*64},1,1) lds={LDS_SIZE}")
    A('.amdgcn_target "amdgcn-amd-amdhsa--gfx950"')
    A(".text")
    A(f".globl {KN}")
    A(".p2align 8")
    A(f".type {KN},@function")
    A(f"{KN}:")
    g.stamp(0)
    A("s_load_dwordx16 s[4:19], s[0:1], 0")
    A("s_load_dwordx8 s[20:27], s[0:1], 64")
    A("s_load_dwordx2 s[28:29], s[0:1], 96")
    A("s_cmp_ge_u32 s2, 256")
    A("s_cbranch_scc1 L_end")
    A("v_lshrrev_b32 v1, 6, v0")
    A("v_and_b32 v0, 63, v0")
    A("v_readfirstlane_b32 s30, v1")
    A("s_and_b32 s31, s2, 7")
    A("s_lshr_b32 s32, s2, 3")
    A("s_lshl_b32 s64, s31, 5\ns_add_u32 s64, s64, s32")
    A("s_mov_b32 s59, 0")
    A(f"v_mov_b32 v15, {LDS_FL}")
    A("s_cmp_eq_u32 s30, 4")
    A("s_cbranch_scc1 L_loader")
    A("s_lshr_b32 s51, s32, 1\ns_lshl_b32 s51, s51, 3\ns_add_u32 s51, s51, s31")
    A("s_and_b32 s52, s32, 1")
    A("s_min_u32 s53, s51, 27")
    A("s_lshl_b32 s53, s53, 5\ns_lshl_b32 s54, s52, 4\ns_add_u32 s53, s53, s54")
    A("v_lshrrev_b32 v2, 3, v0")
    A("v_and_b32 v3, 7, v0")
    A("v_mov_b32 v63, 0")
    A("v_mov_b32 v102, 0")
    A("s_cmp_eq_u32 s30, 5")
    A("s_cbranch_scc1 L_f_par")
    A("s_cmp_lg_u32 s30, 0")
    A("s_cbranch_scc1 L_c123_pre")
    A("s_and_b32 s46, s32, 3")
    A("s_mul_i32 s46, s46, 112")
    A("s_lshl_b32 s44, s46, 13")
    A("s_lshr_b32 s47, s32, 2")
    A("s_lshl_b32 s47, s47, 7")
    A("s_add_u32 s44, s44, s47")
    A("s_lshl_b32 s47, s31, 10")
    A("s_add_u32 s44, s44, s47")
    A("s_movk_i32 s45, 8192")
    A(f"s_mov_b32 s47, {448*4096*2}")
    A("s_waitcnt lgkmcnt(0)")
    A("s_mov_b32 s48, s10")
    A("s_mov_b32 s49, s11")
    A("s_branch L_c01_ld")
    A("L_f_par:")
    A("s_and_b32 s46, s32, 7")
    A("s_mul_i32 s46, s46, 56")
    A("s_mul_i32 s44, s46, 3584")
    A("s_lshl_b32 s47, s31, 2\ns_lshr_b32 s48, s32, 3\ns_add_u32 s47, s47, s48")
    A("s_min_u32 s47, s47, 27")
    A("s_lshl_b32 s47, s47, 7")
    A("s_add_u32 s44, s44, s47")
    A("s_movk_i32 s45, 3584")
    A(f"s_mov_b32 s47, {448*1792*2}")
    A("s_waitcnt lgkmcnt(0)")
    A("s_mov_b32 s48, s16")
    A("s_mov_b32 s49, s17")
    A("L_c01_ld:")
    A("s_mov_b32 s40, s4\ns_and_b32 s41, s5, 0xffff\ns_movk_i32 s42, 896\ns_mov_b32 s43, 0x20000")
    A("v_lshlrev_b32 v4, 4, v0")
    A("buffer_load_dwordx4 v[16:19], v4, s[40:43], 0 offen")
    A("s_add_u32 s36, s48, s44\ns_addc_u32 s37, s49, 0\ns_and_b32 s37, s37, 0xffff")
    A("s_sub_u32 s38, s47, s44\ns_mov_b32 s39, 0x20000")
    A("v_mul_lo_u32 v5, v2, s45")
    A("v_lshl_add_u32 v5, v3, 4, v5")
    A("s_lshl_b32 s45, s45, 3")
    A("s_mov_b32 s50, 0")
    for i in range(7):
        A(f"buffer_load_dwordx4 v[{64+4*i}:{67+4*i}], v5, s[36:39], s50 offen {nt}")
        A("s_add_u32 s50, s50, s45")
    A("s_cmp_eq_u32 s30, 5")
    A("s_cbranch_scc1 L_f_ld2")
    for i in range(7, 14):
        A(f"buffer_load_dwordx4 v[{64+4*i}:{67+4*i}], v5, s[36:39], s50 offen {nt}")
        A("s_add_u32 s50, s50, s45")
    A("global_load_dword v63, v63, s[28:29] sc1")
    A("s_branch L_c_bar0")
    A("L_f_ld2:")
    A("global_load_dword v63, v63, s[28:29] sc1")
    A("s_min_u32 s57, s64, 223")
    A("s_lshl_b32 s57, s57, 4")
    A("v_and_b32 v6, 3, v0")
    A("v_lshl_add_u32 v6, v6, 2, s57")
    A("global_load_dword v60, v6, s[18:19]")
    A("s_branch L_c_bar0")
    A("L_c123_pre:")
    A("s_waitcnt lgkmcnt(0)")
    A("global_load_dword v63, v63, s[28:29] sc1")
    A("s_cmp_eq_u32 s30, 2")
    A("s_cbranch_scc1 L_c2_pre")
    if prefetch:
        A("s_cmp_lg_u32 s30, 3")
        A("s_cbranch_scc1 L_c_bar0")
        A("s_getpc_b64 s[60:61]")
        A("L_pf:")
        A("v_lshlrev_b32 v4, 7, v0")
        A("v_min_u32 v5, L_end-L_pf, v4")
        A("global_load_dword v6, v5, s[60:61]")
        A("v_add_u32 v4, 0x2000, v4")
        A("v_min_u32 v5, L_end-L_pf, v4")
        A("global_load_dword v7, v5, s[60:61]")
    A("s_branch L_c_bar0")
    A("L_c2_pre:")
    A("s_lshl_b32 s60, s31, 14\ns_lshl_b32 s61, s32, 9\ns_add_u32 s60, s60, s61")
    A(f"s_add_u32 s60, s60, {WS_QP}")
    A("s_lshl_b32 s61, s64, 9")
    A(f"s_add_u32 s61, s61, {WS_HP - 512}")
    A("v_mov_b32 v5, s60\nv_mov_b32 v6, s61")
    A("v_cmp_gt_u32 vcc, 4, v0")
    A("v_lshlrev_b32 v4, 7, v0")
    g.nop(1)
    A("v_cndmask_b32 v5, v6, v5, vcc")
    A("v_add_u32 v4, v5, v4")
    A("s_mov_b64 exec, 0xff")
    A("global_load_dword v8, v4, s[28:29]")
    A("s_mov_b64 exec, -1")
    A("L_c_bar0:")
    A("s_barrier")
    g.stamp(1)
    if cut == 1: A("s_endpgm")
    A("s_cmp_eq_u32 s30, 0")
    A("s_cbranch_scc1 L_ln")
    A("s_cmp_lg_u32 s30, 5")
    A("s_cbranch_scc1 L_common")

    A("L_ln:")
    A("s_waitcnt vmcnt(9)")
    for k in range(4):
        A(f"v_lshlrev_b32 v{20+2*k}, 16, v{16+k}")
        A(f"v_and_b32 v{21+2*k}, 0xffff0000, v{16+k}")
    A("v_add_f32 v28, v20, v21\nv_add_f32 v29, v22, v23\nv_add_f32 v30, v24, v25\nv_add_f32 v31, v26, v27")
    A("v_add_f32 v28, v28, v29\nv_add_f32 v30, v30, v31\nv_add_f32 v28, v28, v30")
    g.allreduce("add", 28, 29, [0, 1, 2, 3, 4, 5])
    A(f"s_mov_b32 s60, {f2u(1.0/448):#x}")
    A(f"s_mov_b32 s61, {f2u(448.0):#x}")
    A("v_mul_f32 v29, s60, v28")
    A("v_fma_f32 v30, -v29, s61, v28")
    A("v_fma_f32 v29, v30, s60, v29")
    A("v_mov_b32 v30, 0")
    for k in range(8):
        A(f"v_sub_f32 v31, v{20+k}, v29")
        A("v_fmac_f32 v30, v31, v31")
    A("v_cmp_gt_u32 vcc, 56, v0")
    g.nop(2)
    A("v_cndmask_b32 v30, 0, v30, vcc")
    g.allreduce("add", 30, 31, [0, 1, 2, 3, 4, 5])
    A("v_mul_f32 v31, s60, v30")
    A("v_fma_f32 v32, -v31, s61, v30")
    A("v_fma_f32 v31, v32, s60, v31")
    g.bf16r(29, 29)
    g.bf16r(31, 31)
    A(f"v_add_f32 v31, {f2u(1e-5):#x}, v31")
    g.bf16r(31, 31)
    A("v_sqrt_f32 v31, v31")
    g.nop(1)
    g.bf16r(31, 31)
    A("v_rcp_f32 v32, v31")
    g.nop(1)
    for k in range(4):
        a, b = 20+2*k, 21+2*k
        A(f"v_sub_f32 v{a}, v{a}, v29")
        A(f"v_sub_f32 v{b}, v{b}, v29")
        A(f"v_cvt_pk_bf16_f32 v33, v{a}, v{b}")
        A(f"v_lshlrev_b32 v{a}, 16, v33")
        A(f"v_and_b32 v{b}, 0xffff0000, v33")
        for r in (a, b):
            A(f"v_mul_f32 v34, v{r}, v32")
            A(f"v_fma_f32 v35, -v34, v31, v{r}")
            A(f"v_fma_f32 v{r}, v35, v32, v34")
        A(f"v_cvt_pk_bf16_f32 v{16+k}, v{a}, v{b}")
    A("v_lshlrev_b32 v4, 4, v0")
    A(f"v_add_u32 v4, {LDS_XN}, v4")
    A("ds_write_b128 v4, v[16:19]")
    A("v_add_u32 v6, s46, v2")
    A("v_lshlrev_b32 v6, 1, v6")
    A(f"v_add_u32 v6, {LDS_XN}, v6")
    A("s_waitcnt lgkmcnt(0)")
    for i in range(14):
        A(f"ds_read_u16 v{40+i}, v6 offset:{16*i}")
    for k in range(8):
        A(f"v_mov_b32 v{32+k}, 0")
    A("s_waitcnt vmcnt(0) lgkmcnt(0)")
    early(4)
    def gemv_steps(lo, hi):
        for i in range(lo, hi):
            t = 54 + (i & 1)
            A(f"v_lshlrev_b32 v{t}, 16, v{40+i}")
            for j in range(4):
                A(f"v_dot2_f32_bf16 v{32+2*j}, v{64+4*i+j}, v{40+i}, v{32+2*j}")
            for j in range(4):
                A(f"v_dot2_f32_bf16 v{33+2*j}, v{64+4*i+j}, v{t}, v{33+2*j}")
    gemv_steps(0, 7)
    A("s_cmp_eq_u32 s30, 5")
    A("s_cbranch_scc1 L_gemv_red")
    gemv_steps(7, 14)
    A("L_gemv_red:")
    g.nop(4)
    g.scatter8(32, 42)
    A("v_readfirstlane_b32 s33, v63")
    A(f"s_add_u32 s33, s33, {PHI}")
    A("v_mov_b32 v33, s33")
    A("v_lshlrev_b32 v34, 6, v3")
    A("v_lshl_add_u32 v34, v2, 3, v34")
    A("s_cmp_eq_u32 s30, 5")
    A("s_cbranch_scc1 L_f_pub")
    A("s_lshl_b32 s60, s31, 14\ns_lshl_b32 s61, s32, 9\ns_add_u32 s60, s60, s61")
    A(f"s_add_u32 s60, s60, {WS_QP}")
    A("v_add_u32 v34, s60, v34")
    A("global_store_dwordx2 v34, v[32:33], s[28:29]")
    A(f"v_add_u32 v102, {SLOW:#x}, v34")
    A("v_mov_b32 v100, v32\nv_mov_b32 v101, v33")
    early(5)
    A("s_branch L_common2")

    A("L_f_pub:")
    A("s_cmp_eq_u32 s31, 7")
    A("s_cbranch_scc1 L_g_zero")
    A("s_lshl_b32 s60, s64, 9")
    A(f"s_add_u32 s60, s60, {WS_HP}")
    A("v_add_u32 v34, s60, v34")
    A("global_store_dwordx2 v34, v[32:33], s[28:29]")
    A(f"v_add_u32 v34, {SLOW:#x}, v34")
    A("global_store_dwordx2 v34, v[32:33], s[28:29] sc1")
    A("v_lshrrev_b32 v4, 2, v0\nv_and_b32 v4, 7, v4\nv_lshlrev_b32 v4, 9, v4")
    A("v_and_b32 v5, 3, v0\nv_lshl_add_u32 v4, v5, 4, v4")
    A("s_lshl_b32 s60, s31, 5\ns_and_b32 s61, s32, 24\ns_add_u32 s60, s60, s61\ns_lshl_b32 s60, s60, 9")
    A("s_and_b32 s61, s32, 7\ns_lshl_b32 s61, s61, 6\ns_add_u32 s60, s60, s61")
    A(f"s_add_u32 s60, s60, {WS_HP}")
    A("v_add_u32 v4, s60, v4")
    A("s_sleep 24")
    g.poll(lambda: A("global_load_dwordx4 v[64:67], v4, s[28:29] sc1"), [65, 67], sleep=8, addr=[4])
    g.allreduce("add", 64, 68, [2, 3, 4])
    g.allreduce("add", 66, 68, [2, 3, 4])
    A("v_cvt_pk_bf16_f32 v64, v64, v66")
    A("v_lshlrev_b32 v65, 16, v64\nv_and_b32 v66, 0xffff0000, v64")
    A("v_lshlrev_b32 v67, 16, v60\nv_and_b32 v68, 0xffff0000, v60")
    A("v_add_f32 v65, v65, v67\nv_add_f32 v66, v66, v68")
    A("v_cvt_pk_bf16_f32 v64, v65, v66")
    A("v_lshlrev_b32 v65, 16, v64\nv_and_b32 v66, 0xffff0000, v64")
    k1 = 2*math.log2(math.e)*math.sqrt(2/math.pi)
    A(f"s_mov_b32 s60, {f2u(k1):#x}")
    A(f"s_mov_b32 s61, {f2u(0.044715):#x}")
    for r in (65, 66):
        A(f"v_mul_f32 v67, v{r}, v{r}")
        A(f"v_mul_f32 v67, v67, v{r}")
        A(f"v_fma_f32 v67, v67, s61, v{r}")
        A(f"v_mul_f32 v67, s60, v67")
        A("v_exp_f32 v67, v67")
        g.nop(1)
        A("v_add_f32 v67, 1.0, v67")
        A("v_rcp_f32 v67, v67")
        g.nop(1)
        A("v_sub_f32 v67, 1.0, v67")
        A(f"v_mul_f32 v{r}, v{r}, v67")
    A("v_cvt_pk_bf16_f32 v64, v65, v66")
    A("s_branch L_g_wr")
    A("L_g_zero:")
    A("v_mov_b32 v64, 0")
    A("L_g_wr:")
    A("v_and_b32 v4, 3, v0\nv_lshlrev_b32 v4, 2, v4")
    A(f"v_add_u32 v4, {LDS_G}, v4")
    A("ds_write_b32 v4, v64")
    A("s_waitcnt lgkmcnt(0)")
    g.set_lds(F_G, 1)
    early(8)
    A("v_lshlrev_b32 v4, 12, v2")
    A("v_lshl_add_u32 v4, v3, 4, v4")
    A("s_lshl_b32 s60, s31, 17\ns_lshl_b32 s61, s32, 7\ns_add_u32 s60, s60, s61")
    A(f"s_add_u32 s60, s60, {WS_OP}")
    A("v_add_u32 v20, s60, v4")
    for i in range(1, 4):
        A(f"v_add_u32 v{20+i}, {8*OP_STRIDE*i}, v20")
    A("v_and_b32 v4, 31, v0\nv_lshlrev_b32 v4, 4, v4")
    A("s_lshl_b32 s60, s31, 1\ns_lshr_b32 s61, s32, 4\ns_add_u32 s60, s60, s61\ns_lshl_b32 s60, s60, 9")
    A(f"s_add_u32 s60, s60, {WS_ST}")
    A("v_add_u32 v24, s60, v4")
    A("v_lshlrev_b32 v25, 2, v2")
    A("v_and_b32 v26, 3, v0\nv_lshlrev_b32 v26, 3, v26\nv_bfe_u32 v4, v0, 2, 1\nv_lshl_add_u32 v26, v4, 2, v26")
    A(f"v_add_u32 v26, {LDS_O8}, v26")
    cexp = math.log2(math.e)/16.0
    A(f"s_mov_b32 s65, {f2u(cexp):#x}")
    g.wait_lds(F_K, 1, sleep=4)
    A("v_lshlrev_b32 v4, 7, v0")
    A("s_lshl_b32 s60, s64, 12")
    A(f"s_add_u32 s60, s60, {WS_OP}")
    A("v_add_u32 v4, s60, v4")
    A("s_mov_b32 exec_hi, 0")
    A("global_load_dword v8, v4, s[28:29]")
    A("global_load_dwordx4 v[80:83], v24, s[28:29] sc1")
    A("s_mov_b64 exec, -1")
    g.wait_lds(F_ST, 1, sleep=4)
    A(f"s_sleep {dlS}")
    g.poll(lambda: A("global_load_dwordx4 v[80:83], v24, s[28:29] sc1"), [81, 83], sleep=slS, addr=[24])
    late(5)
    A("v_mov_b32 v84, v80")
    g.allreduce("max", 84, 85, [0, 1, 2, 3, 4])
    A("v_sub_f32 v84, v80, v84")
    A("v_mul_f32 v84, s65, v84")
    A("v_exp_f32 v84, v84")
    g.nop(1)
    A("v_mul_f32 v85, v84, v82")
    g.allreduce("add", 85, 86, [0, 1, 2, 3, 4])
    A("v_rcp_f32 v85, v85")
    g.nop(1)
    A("v_mul_f32 v84, v84, v85")
    for i in range(4):
        A(f"v_add_u32 v85, {32*i}, v25")
        A(f"ds_bpermute_b32 v{88+i}, v85, v84")
    late(6)
    g.wait_lds(F_OS, 4, sleep=slF)
    late(7)
    def cloads():
        for i in range(4):
            A(f"global_load_dwordx4 v[{64+4*i}:{67+4*i}], v{20+i}, s[28:29] sc1")
    g.poll(cloads, [65, 67, 69, 71, 73, 75, 77, 79], sleep=slC, addr=[20, 21, 22, 23])
    late(8)
    A("v_mul_f32 v92, v88, v64\nv_mul_f32 v93, v88, v66")
    for i in range(1, 4):
        A(f"v_fmac_f32 v92, v{88+i}, v{64+4*i}")
        A(f"v_fmac_f32 v93, v{88+i}, v{66+4*i}")
    g.nop(1)
    A("v_permlane32_swap_b32 v92, v93")
    g.nop(1)
    A("v_add_f32 v92, v92, v93")
    g.allreduce("add", 92, 93, [3, 4])
    A("v_mov_b32 v93, v92")
    g.nop(2)
    A("v_permlane32_swap_b32 v92, v93")
    g.nop(1)
    A("v_cvt_pk_bf16_f32 v88, v92, v93")
    A("s_mov_b64 exec, 0xff")
    A("ds_write_b32 v26, v88")
    A("s_mov_b64 exec, -1")
    g.set_lds(F_O, 1)
    late(9)
    A("s_waitcnt lgkmcnt(0)")
    g.flush_stamps()
    A("s_endpgm")

    A("L_common:")
    A("s_waitcnt vmcnt(0)")
    A("v_readfirstlane_b32 s33, v63")
    A(f"s_add_u32 s33, s33, {PHI}")
    A("L_common2:")
    A("v_and_b32 v6, 15, v0")
    A("v_lshrrev_b32 v5, 4, v0")
    A("v_xor_b32 v7, v5, v6")
    A("s_lshl_b32 s60, s30, 14")
    for m in range(4):
        A(f"v_xor_b32 v{8+m}, {4*m}, v7")
        A(f"v_lshlrev_b32 v{8+m}, 4, v{8+m}")
        A(f"v_lshl_add_u32 v{8+m}, v6, 9, v{8+m}")
        A(f"v_add_u32 v{8+m}, s60, v{8+m}")
    A("v_and_b32 v4, 1, v0\nv_lshlrev_b32 v4, 9, v4")
    A("v_lshl_add_u32 v4, v5, 4, v4")
    A(f"v_add_u32 v27, {LDS_Q}, v4")
    A("v_and_b32 v4, 1, v0\nv_lshl_add_u32 v4, v5, 1, v4\nv_lshlrev_b32 v4, 4, v4")
    A(f"v_add_u32 v4, {LDS_PX}, v4")
    A("s_lshl_b32 s60, s30, 7")
    A("v_add_u32 v30, s60, v4")
    A(f"v_mov_b32 v7, {LDS_ZX}")
    for t in range(4):
        A(f"s_mov_b32 s66, {0x00030003 << (2*t):#x}\ns_mov_b32 s67, s66")
        A(f"v_cndmask_b32 v{20+t}, v7, v4, s[66:67]")
    A("v_and_b32 v31, 1, v0\nv_lshlrev_b32 v31, 3, v31")
    A(f"v_add_u32 v31, {LDS_SX}, v31")
    A("v_lshrrev_b32 v4, 2, v0")
    A("v_and_b32 v7, 7, v4")
    A("v_and_b32 v12, 3, v0\nv_lshlrev_b32 v12, 3, v12")
    A("v_lshl_add_u32 v12, v4, 9, v12")
    A(f"v_add_u32 v12, {LDS_V}, v12")
    A("s_lshl_b32 s60, s30, 2")
    for t in range(4):
        A(f"s_add_u32 s61, s60, {t}")
        A(f"v_xor_b32 v{16+t}, s61, v7")
        A(f"v_lshl_add_u32 v{16+t}, v{16+t}, 5, v12")
    A("s_lshl_b32 s66, s64, 12")
    A(f"s_add_u32 s66, s66, {WS_OP}")
    A("v_and_b32 v4, 1, v0\nv_lshlrev_b32 v4, 4, v4")
    A("v_bfe_u32 v7, v0, 1, 3")
    A("v_add3_u32 v4, v4, v7, s60")
    A("v_lshlrev_b32 v4, 7, v4")
    A("v_lshl_add_u32 v4, v5, 4, v4")
    A("v_add_u32 v12, s66, v4")
    A(f"v_add_u32 v13, {SLOW:#x}, v12")
    for r in (241, 243, 245, 247):
        A(f"v_mov_b32 v{r}, s33")
    A("v_lshrrev_b32 v4, 5, v0")
    A("s_lshl_b32 s60, s30, 1")
    A("v_add_u32 v4, s60, v4")
    A("v_and_b32 v7, 31, v0")
    A("v_lshlrev_b32 v25, 11, v4")
    A("v_lshl_add_u32 v25, v7, 4, v25")
    A("s_lshl_b32 s60, s31, 14")
    A(f"s_add_u32 s60, s60, {WS_QP}")
    A("v_add_u32 v25, s60, v25")
    A("v_lshlrev_b32 v26, 7, v4")
    A("v_lshl_add_u32 v26, v7, 2, v26")
    A(f"v_add_u32 v26, {LDS_Q}, v26")
    A("s_mul_i32 s60, s30, 56")
    A("v_add_u32 v4, s60, v0")
    A("v_lshlrev_b32 v29, 4, v4")
    A(f"s_mul_i32 s60, s2, {PP_STRIDE}")
    A(f"s_add_u32 s60, s60, {WS_PP}")
    A("v_add_u32 v29, s60, v29")
    A("v_lshlrev_b32 v4, 2, v4")
    A(f"v_add_u32 v28, {LDS_W}, v4")
    A(f"s_movk_i32 s60, {PP_STRIDE}")
    A("v_lshrrev_b32 v4, 2, v0")
    A("v_mul_lo_u32 v4, v4, s60")
    A("v_and_b32 v7, 3, v0")
    A("v_lshl_add_u32 v4, v7, 4, v4")
    A("s_min_u32 s60, s51, 27\ns_lshl_b32 s60, s60, 7\ns_lshl_b32 s61, s52, 6\ns_add_u32 s60, s60, s61")
    A(f"s_mul_i32 s61, s30, {64*PP_STRIDE}")
    A("s_add_u32 s60, s60, s61")
    A(f"s_add_u32 s60, s60, {WS_PP}")
    A("v_add_u32 v248, s60, v4")
    for i in range(1, 4):
        A(f"v_add_u32 v{248+i}, {i*16*PP_STRIDE}, v248")
    A("v_lshrrev_b32 v4, 5, v0\nv_lshlrev_b32 v4, 2, v4\nv_add_u32 v4, v4, v7\nv_lshlrev_b32 v4, 2, v4")
    A(f"v_add_u32 v252, {LDS_PX}, v4")
    A("s_lshl_b32 s60, s30, 5")
    A("v_add_u32 v253, s60, v252")
    A("v_lshl_add_u32 v24, v7, 2, s53")
    A(f"s_mov_b32 s65, {f2u(cexp):#x}")
    A("s_cmp_lg_u32 s30, 0")
    A("s_cbranch_scc1 L_wait_pub")
    A("global_load_dword v254, v24, s[4:5]")
    A("global_load_dword v255, v24, s[22:23]")
    if dlA: A(f"s_sleep {dlA}")
    g.set_lds(F_PUB, 1)
    early(6)
    A("s_branch L_qgather")
    A("L_wait_pub:")
    g.wait_lds(F_PUB, 1, sleep=4)
    A("L_qgather:")
    def qloads():
        for rc in range(4):
            A(f"global_load_dwordx4 v[{64+4*rc}:{67+4*rc}], v25, s[28:29] offset:{512*rc} sc1")
    def qfirst():
        qloads()
        Lq = g.label("qs"); Lr = g.label("qr")
        A("s_cmp_lg_u32 s30, 0")
        A(f"s_cbranch_scc1 {Lq}")
        A("global_store_dwordx2 v102, v[100:101], s[28:29] sc1")
        A(f"s_branch {Lr}")
        A(f"{Lq}:")
        A("s_waitcnt vmcnt(0)")
        A(f"{Lr}:")
    g.poll(qloads, [65, 67, 69, 71, 73, 75, 77, 79], sleep=slA, addr=[25], first=qfirst, nafter=1)
    A("v_add_f32 v64, v64, v68\nv_add_f32 v66, v66, v70")
    A("v_add_f32 v64, v64, v72\nv_add_f32 v66, v66, v74")
    A("v_add_f32 v64, v64, v76\nv_add_f32 v66, v66, v78")
    A("v_cvt_pk_bf16_f32 v64, v64, v66")
    A("ds_write_b32 v26, v64")
    A("s_waitcnt lgkmcnt(0)")
    g.add_lds(F_Q)
    early(7)
    if cut == 2: A("s_endpgm")
    g.wait_lds(F_K, 1, sleep=3)
    for T in range(2):
        for s in range(8):
            b = 64 + 32*T + 4*s
            A(f"ds_read_b128 v[{b}:{b+3}], v{8+(s&3)} offset:{(s>>2)*256 + T*8192 + LDS_K}")
    g.wait_lds(F_Q, 4, sleep=1)
    early(8)
    for s in range(8):
        A(f"ds_read_b128 v[{32+4*s}:{35+4*s}], v27 offset:{64*s}")
    for s in range(8):
        A(f"s_waitcnt lgkmcnt({7-s})")
        for T in range(2):
            b = 64 + 32*T + 4*s
            D = 128 + 4*T
            C = "0" if s == 0 else f"v[{D}:{D+3}]"
            A(f"v_mfma_f32_16x16x32_bf16 v[{D}:{D+3}], v[{b}:{b+3}], v[{32+4*s}:{35+4*s}], {C}")
    g.nop(8)
    for k in range(4):
        a, b = 128+2*k, 129+2*k
        A(f"v_cvt_pk_bf16_f32 v4, v{a}, v{b}")
        A(f"v_lshlrev_b32 v{a}, 16, v4")
        A(f"v_and_b32 v{b}, 0xffff0000, v4")
    A("v_max3_f32 v4, v128, v129, v130")
    A("v_max3_f32 v4, v4, v131, v132")
    A("v_max3_f32 v4, v4, v133, v134")
    A("v_max_f32 v4, v4, v135")
    g.allreduce("max", 4, 5, [4, 5])
    A("v_mul_f32 v6, s65, v4")
    for k in range(8):
        A(f"v_fma_f32 v{128+k}, v{128+k}, s65, -v6")
    for k in range(8):
        A(f"v_exp_f32 v{128+k}, v{128+k}")
    g.nop(1)
    A("v_add_f32 v5, v128, v129\nv_add_f32 v6, v130, v131\nv_add_f32 v7, v132, v133\nv_add_f32 v140, v134, v135")
    A("v_add_f32 v5, v5, v6\nv_add_f32 v7, v7, v140")
    for q in range(4):
        A(f"v_cvt_pk_bf16_f32 v{136+q}, v{128+2*q}, v{129+2*q}")
    A("v_add_f32 v5, v5, v7")
    g.allreduce("add", 5, 6, [4, 5])
    A("s_mov_b32 exec_lo, 0x00030003\ns_mov_b32 exec_hi, 0x00030003")
    A("ds_write_b128 v30, v[136:139]")
    A("s_mov_b64 exec, 3")
    A("s_lshl_b32 s60, s30, 4")
    A("v_add_u32 v6, s60, v31")
    A("ds_write_b64 v6, v[4:5]")
    A("s_waitcnt lgkmcnt(0)")
    g.add_lds(F_P)
    early(9)
    g.wait_lds(F_P, 4, sleep=1)
    for s in range(4):
        A(f"ds_read_b64 v[{140+2*s}:{141+2*s}], v31 offset:{16*s}")
    for s in range(4):
        for t in range(4):
            b = 160+16*s+4*t
            A(f"ds_read_b128 v[{b}:{b+3}], v{20+t} offset:{128*s}")
    A("s_waitcnt lgkmcnt(0)")
    A("v_max3_f32 v4, v140, v142, v144")
    A("v_max_f32 v4, v4, v146")
    for s in range(4):
        A(f"v_sub_f32 v{148+s}, v{140+2*s}, v4")
        A(f"v_mul_f32 v{148+s}, s65, v{148+s}")
    for s in range(4):
        A(f"v_exp_f32 v{148+s}, v{148+s}")
    g.nop(1)
    A("v_mul_f32 v6, v148, v141")
    for s in range(1, 4):
        A(f"v_fmac_f32 v6, v{148+s}, v{141+2*s}")
    A("s_cmp_lg_u32 s30, 0")
    Ls = g.label("nostat")
    A(f"s_cbranch_scc1 {Ls}")
    A("v_mov_b32 v5, s33\nv_mov_b32 v7, s33")
    A("v_lshlrev_b32 v152, 9, v0")
    A("s_lshl_b32 s60, s31, 10\ns_lshl_b32 s61, s32, 4\ns_add_u32 s60, s60, s61")
    A(f"s_add_u32 s60, s60, {WS_ST}")
    A("v_add_u32 v152, s60, v152")
    A("s_mov_b64 exec, 3")
    A("global_store_dwordx4 v152, v[4:7], s[28:29]")
    A(f"v_add_u32 v152, {SLOW:#x}, v152")
    A("global_store_dwordx4 v152, v[4:7], s[28:29] sc1")
    A("s_mov_b64 exec, -1")
    g.set_lds(F_ST, 1)
    A(f"{Ls}:")
    early(10)
    g.wait_lds(F_G, 1, sleep=3)
    A(f"v_mov_b32 v4, {LDS_G}")
    A("ds_read_b128 v[156:159], v4")
    if cut == 3: A("s_endpgm")
    for s in range(4):
        if s == 3:
            g.nop(8)
            for i in range(4):
                A(f"v_mul_f32 v{152+i}, v148, v{224+i}")
                A(f"v_fmac_f32 v{152+i}, v149, v{228+i}")
                A(f"v_fmac_f32 v{152+i}, v150, v{232+i}")
        g.wait_lds(F_V, s+1, sleep=(3 if s < 3 else slF))
        if s == 3: g.stamp(11)
        for t in range(4):
            A(f"ds_read_b64_tr_b16 v[{64+4*t}:{65+4*t}], v{16+t} offset:{s*16384}")
            A(f"ds_read_b64_tr_b16 v[{66+4*t}:{67+4*t}], v{16+t} offset:{s*16384+8192}")
        D = 224 + 4*s
        for t in range(4):
            A(f"s_waitcnt lgkmcnt({6-2*t})")
            C = "0" if t == 0 else f"v[{D}:{D+3}]"
            b = 160+16*s+4*t
            A(f"v_mfma_f32_16x16x32_bf16 v[{D}:{D+3}], v[{64+4*t}:{67+4*t}], v[{b}:{b+3}], {C}")
    if cut == 4: A("s_endpgm")
    A("s_mov_b32 exec_lo, 0x00ff00ff\ns_mov_b32 exec_hi, 0x00ff00ff")
    g.nop(6)
    for i in range(4):
        A(f"v_fma_f32 v{240+2*i}, v151, v{236+i}, v{152+i}")
    A("global_store_dwordx4 v12, v[240:243], s[28:29]")
    A("global_store_dwordx4 v12, v[244:247], s[28:29] offset:64")
    A("s_mov_b64 exec, 1")
    A("v_mov_b32 v14, 1")
    A(f"ds_add_u32 v15, v14 offset:{F_OS}")
    A("s_mov_b32 exec_lo, 0x00ff00ff\ns_mov_b32 exec_hi, 0x00ff00ff")
    A("global_store_dwordx4 v13, v[240:243], s[28:29] sc1")
    A("global_store_dwordx4 v13, v[244:247], s[28:29] offset:64 sc1")
    A("s_mov_b64 exec, -1")
    late(4)
    if cut == 5: A("s_endpgm")
    A("s_mov_b32 s60, 0x05040100\ns_mov_b32 s61, 0x07060302")
    A("v_mov_b32 v232, 0\nv_mov_b32 v234, 0\nv_mov_b32 v236, 0\nv_mov_b32 v238, 0\nv_mov_b32 v233, s33\nv_mov_b32 v235, s33")
    A(f"v_mov_b32 v4, {LDS_O8}")
    g.wait_lds(F_W, 1, sleep=slF)
    g.stamp(12)
    for k in [8, 9, 10, 11, 0, 1, 2, 3, 4, 5, 6, 7]:
        A(f"ds_read2st64_b32 v[{96+2*k}:{97+2*k}], v28 offset0:{8*k} offset1:{8*k+4}")
    for n, k in enumerate([8, 9, 10, 11, 0, 1, 2, 3, 4, 5, 6, 7]):
        A(f"s_waitcnt lgkmcnt({11-n})")
        A(f"v_perm_b32 v{128+k}, v{97+2*k}, v{96+2*k}, s60")
        A(f"v_perm_b32 v{144+k}, v{97+2*k}, v{96+2*k}, s61")
        if n >= 4 and n < 8:
            kk = 8 + (n - 4)
            A(f"v_dot2_f32_bf16 v{232+4*(kk&1)}, v{128+kk}, v{156+kk-8}, v{232+4*(kk&1)}")
            A(f"v_dot2_f32_bf16 v{234+4*(kk&1)}, v{144+kk}, v{156+kk-8}, v{234+4*(kk&1)}")
    late(7)
    g.wait_lds(F_O, 1, sleep=0)
    A("ds_read_b128 v[64:67], v4")
    A("ds_read_b128 v[68:71], v4 offset:16")
    g.stamp(13)
    A("s_waitcnt lgkmcnt(1)")
    for k in range(8):
        if k == 4: A("s_waitcnt lgkmcnt(0)")
        A(f"v_dot2_f32_bf16 v{232+4*(k&1)}, v{128+k}, v{64+k}, v{232+4*(k&1)}")
        A(f"v_dot2_f32_bf16 v{234+4*(k&1)}, v{144+k}, v{64+k}, v{234+4*(k&1)}")
    A("s_mov_b32 exec_lo, -1\ns_mov_b32 exec_hi, 0x00ffffff")
    g.nop(2)
    A("v_add_f32 v232, v232, v236\nv_add_f32 v234, v234, v238")
    A("global_store_dwordx4 v29, v[232:235], s[28:29] sc1")
    late(8)
    A("s_mov_b64 exec, -1")
    if cut == 6: A("s_endpgm")
    A("s_cmp_ge_u32 s51, 28")
    A("s_cbranch_scc1 L_fin")
    A("s_cmp_ge_u32 s32, 8")
    A("s_cbranch_scc1 L_fin")
    A("v_lshlrev_b32 v68, 16, v254\nv_and_b32 v69, 0xffff0000, v254")
    A("v_lshlrev_b32 v70, 16, v255\nv_and_b32 v71, 0xffff0000, v255")
    A("v_add_f32 v254, v68, v70\nv_add_f32 v255, v69, v71")
    A("s_waitcnt vmcnt(0)")
    g.stamp(9)
    def dloads():
        for i in range(4):
            A(f"global_load_dwordx4 v[{64+4*i}:{67+4*i}], v{248+i}, s[28:29] sc1")
    g.poll(dloads, sum([[65+4*i, 67+4*i] for i in range(4)], []), sleep=slD)
    g.stamp(2)
    A("v_add_f32 v64, v64, v68\nv_add_f32 v72, v72, v76\nv_add_f32 v66, v66, v70\nv_add_f32 v74, v74, v78")
    A("v_add_f32 v64, v64, v72\nv_add_f32 v66, v66, v74")
    g.nop(1)
    A("v_permlane32_swap_b32 v64, v66")
    g.nop(1)
    A("v_add_f32 v64, v64, v66")
    g.allreduce("add", 64, 68, [2, 3, 4])
    A("ds_write_b32 v253, v64")
    A("s_waitcnt lgkmcnt(0)")
    A("s_barrier")
    A("s_cmp_lg_u32 s30, 0")
    A("s_cbranch_scc1 L_fin")
    for u in range(4):
        A(f"ds_read_b32 v{64+u}, v252 offset:{32*u}")
    A("s_waitcnt lgkmcnt(0)")
    A("v_add_f32 v64, v64, v65\nv_add_f32 v66, v66, v67")
    A("v_add_f32 v64, v64, v66")
    A("v_mov_b32 v66, v64")
    g.nop(2)
    A("v_permlane32_swap_b32 v64, v66")
    g.nop(1)
    A("v_add_f32 v64, v64, v254\nv_add_f32 v66, v66, v255")
    A("v_cvt_pk_bf16_f32 v64, v64, v66")
    A("s_mov_b64 exec, 15")
    A("global_store_dword v24, v64, s[24:25]")
    A("s_mov_b64 exec, 1")
    A("s_cmp_lg_u32 s2, 0")
    A("s_cbranch_scc1 L_fin")
    A("v_mov_b32 v4, 0\nv_mov_b32 v5, s33")
    A("global_store_dword v4, v5, s[28:29] sc1")
    A("L_fin:")
    g.stamp(3)
    g.flush_stamps()
    A("s_endpgm")

    A("L_loader:")
    A("v_mov_b32 v4, 0\nv_mov_b32 v5, 0\nv_mov_b32 v6, 0\nv_mov_b32 v7, 0")
    for o in (0, 16, 32): A(f"ds_write_b128 v15, v[4:7] offset:{o}")
    A("v_lshlrev_b32 v8, 3, v0")
    A(f"v_add_u32 v8, {LDS_ZX}, v8")
    A("ds_write_b64 v8, v[4:5]")
    A("v_lshrrev_b32 v1, 5, v0")
    A("v_and_b32 v2, 31, v0")
    A("v_xor_b32 v3, v2, v1")
    A("v_lshlrev_b32 v3, 4, v3")
    A("v_lshl_add_u32 v3, v1, 9, v3")
    for b in range(8):
        A(f"v_xor_b32 v{16+b}, {(2*b) << 4}, v3")
    A("v_lshlrev_b32 v3, 1, v1")
    A("v_xor_b32 v3, v2, v3")
    A("v_lshlrev_b32 v3, 4, v3")
    A("v_lshl_add_u32 v3, v1, 9, v3")
    for b in range(4):
        A(f"v_xor_b32 v{24+b}, {((2*b) & 7) << 5}, v3")
    A("v_lshlrev_b32 v28, 4, v0")
    A("s_lshl_b32 s44, s31, 25\ns_add_u32 s44, s44, 0x1e00000\ns_lshl_b32 s45, s32, 16\ns_add_u32 s44, s44, s45")
    A(f"s_mul_i32 s45, s64, {16*896}")
    A("s_min_u32 s46, s64, 223")
    A(f"s_mul_i32 s46, s46, {8*896}")
    A("s_waitcnt lgkmcnt(0)")
    def srd(d, lo, hi, off, n):
        A(f"s_add_u32 s{d}, s{lo}, s{off}\ns_addc_u32 s{d+1}, s{hi}, 0\ns_and_b32 s{d+1}, s{d+1}, 0xffff")
        A(f"s_mov_b32 s{d+2}, {n}\ns_mov_b32 s{d+3}, 0x20000")
    srd(36, 6, 7, 44, 65536)
    srd(40, 8, 9, 44, 65536)
    srd(48, 12, 13, 45, 16*896)
    srd(52, 20, 21, 46, 8*896)
    A("s_barrier")
    g.stamp(1)
    groups = []
    for k in range(16):
        groups.append([(36, 16 + (4*k + i) % 8, LDS_K + 4096*k, 4096*k, 1024*i) for i in range(4)])
    for k in range(16):
        groups.append([(40, 24 + i, LDS_V + 4096*k, 4096*k, 1024*i) for i in range(4)])
    nkv = 128
    events = [(64, F_K, 1, 2), (80, F_V, 1, None), (96, F_V, 2, None), (112, F_V, 3, None), (128, F_V, 4, 3)]
    issued = 0
    ev = 0
    def progress(done):
        nonlocal ev
        while ev < len(events) and events[ev][0] <= done:
            g.set_lds(events[ev][1], events[ev][2])
            if events[ev][3] is not None: g.stamp(events[ev][3])
            ev += 1
    for gi, grp in enumerate(groups):
        A(f"s_mov_b32 m0, {grp[0][2]}")
        A(f"s_mov_b32 s56, {grp[0][3]}")
        for (sr, va, lb, so, io) in grp:
            A(f"buffer_load_dwordx4 v{va}, s[{sr}:{sr+3}], s56 offen offset:{io} {nt} lds")
            issued += 1
        if issued > window:
            A(f"s_waitcnt vmcnt({window})")
            progress(issued - window)
    A("s_mov_b32 exec_lo, -1\ns_mov_b32 exec_hi, 0x00ffffff")
    rows = [(52, 16 + r, r) for r in range(8)] + [(48, r, r) for r in range(16)]
    for n, (sr, lr, r) in enumerate(rows):
        A(f"s_mov_b32 m0, {LDS_W + 1024*lr}")
        A(f"s_movk_i32 s56, {896*r}")
        A(f"buffer_load_dwordx4 v28, s[{sr}:{sr+3}], s56 offen {nt} lds")
        issued += 1
        if n % 4 == 3 and n < len(rows) - 1:
            A(f"s_waitcnt vmcnt({window})")
            A("s_mov_b64 exec, -1")
            progress(issued - window)
            A("s_mov_b32 exec_lo, -1\ns_mov_b32 exec_hi, 0x00ffffff")
    A("s_mov_b64 exec, -1")
    g.stamp(5)
    total = issued
    while ev < len(events):
        A(f"s_waitcnt vmcnt({total - events[ev][0]})")
        g.set_lds(events[ev][1], events[ev][2])
        if events[ev][3] is not None: g.stamp(events[ev][3])
        ev += 1
    A("s_waitcnt vmcnt(0)")
    g.set_lds(F_W, 1)
    g.stamp(4)
    A("s_waitcnt lgkmcnt(0)")
    g.flush_stamps()
    A("L_end:")
    A("s_endpgm")
    A('.section .rodata,"a"')
    A(".p2align 6")
    A(f".amdhsa_kernel {KN}")
    A("  .amdhsa_next_free_vgpr 256")
    A("  .amdhsa_next_free_sgpr 102")
    A("  .amdhsa_accum_offset 256")
    A("  .amdhsa_group_segment_fixed_size 0")
    A("  .amdhsa_kernarg_size 104")
    A("  .amdhsa_user_sgpr_count 2")
    A("  .amdhsa_user_sgpr_kernarg_segment_ptr 1")
    A("  .amdhsa_system_sgpr_workgroup_id_x 1")
    A(".end_amdhsa_kernel")
    return "\n".join(g.L) + "\n"

if __name__ == "__main__":
    import argparse
    ap = argparse.ArgumentParser()
    ap.add_argument("-o", default="cdna_kernels/" + NAME + ".s")
    ap.add_argument("--stamps", action="store_true")
    ap.add_argument("--tail", action="store_true")
    ap.add_argument("--nopf", action="store_true")
    for k, d in dict(window=24, cut=0, dlA=16, slA=8, slS=4, slC=1, slD=1, slF=1, dlS=6).items():
        ap.add_argument("--" + k, type=int, default=d)
    ap.add_argument("--nt", default="nt")
    a = ap.parse_args()
    open(a.o, "w").write(build(stamps=a.stamps, window=a.window, nt=a.nt, cut=a.cut, dlA=a.dlA, slA=a.slA, slS=a.slS, slC=a.slC, slD=a.slD, prefetch=not a.nopf, tail=a.tail, slF=a.slF, dlS=a.dlS))
    print("wrote", a.o)
```
